```python
import torch

def _softmax(x, axis=-1):
    return torch.softmax(x, dim=axis)
def _gelu(x):
    return torch.nn.functional.gelu(x, approximate="tanh")
def _silu(x):
    return torch.nn.functional.silu(x)
def _sigmoid(x):
    return torch.sigmoid(x)
def _layernorm(x, axis=-1, eps=1e-5):
    m = x.mean(dim=axis, keepdim=True)
    v = x.var(dim=axis, keepdim=True, unbiased=False)
    return (x - m) / torch.sqrt(v + eps)
def _scatter_add(tgt, idx, src, axis=0):
    return tgt.clone().index_add_(axis, idx, src)
def _segment_sum(src, seg, n):
    out = torch.zeros((n,) + src.shape[1:], dtype=src.dtype)
    return out.index_add_(0, seg, src)
def _pad(x, pw):
    flat = tuple(v for pair in reversed(pw) for v in pair)
    return torch.nn.functional.pad(x, flat)

kernel_name = 'parallel_sum__sliding_local_dilated__geglu_ffn__prompt'

def setup_inputs():

    _w = (lambda a: (lambda t: t.to(torch.bfloat16) if t.is_floating_point() else t)(torch.as_tensor(a)))
    def _A_setup():
        B, S, D = 1, 2048, 1024
        return {
            "x": _w((lambda *s: torch.randn(*s, dtype=torch.bfloat16) * 0.05)(B, S, D)),
            "wqkv": _w((lambda *s: torch.randn(*s, dtype=torch.bfloat16) * 0.05)(D, 3 * D)),
            "wo": _w((lambda *s: torch.randn(*s, dtype=torch.bfloat16) * 0.05)(D, D)),
        }
    _A_in = _A_setup()

    def _B_setup():
        B, S, D, F = 1, 2048, 1024, 3584
        return {
            "x": _w((lambda *s: torch.randn(*s, dtype=torch.bfloat16) * 0.05)(B, S, D)),
            "w_gate": _w((lambda *s: torch.randn(*s, dtype=torch.bfloat16) * 0.05)(D, F)),
            "w_up": _w((lambda *s: torch.randn(*s, dtype=torch.bfloat16) * 0.05)(D, F)),
            "w_down": _w((lambda *s: torch.randn(*s, dtype=torch.bfloat16) * 0.05)(F, D)),
        }
    _B_in = _B_setup()

    return {
        "A_x": _A_in["x"],
        "A_wqkv": _A_in["wqkv"],
        "A_wo": _A_in["wo"],
        "B_x": _B_in["x"],
        "B_w_gate": _B_in["w_gate"],
        "B_w_up": _B_in["w_up"],
        "B_w_down": _B_in["w_down"],
    }

def reference(A_x, A_wqkv, A_wo, B_x, B_w_gate, B_w_up, B_w_down):
    def _A_ref(x, wqkv, wo):
        B, S, D = x.shape
        H = 32; Dh = D // H
        W, dil = 8, 2
        qkv = (lambda x, *d: x.permute(*d))((x @ wqkv).reshape(B, S, 3, H, Dh), 2, 0, 3, 1, 4)
        q, k, v = qkv[0], qkv[1], qkv[2]
        scale = Dh ** -0.5
        pos = torch.arange(S)
        off = torch.arange(W) * dil
        idx = pos[:, None] - off[None, :]
        mask = idx >= 0
        idx_c = torch.where(mask, idx, 0).reshape(-1)
        kg = k[:, :, idx_c, :].reshape(B, H, S, W, Dh)
        vg = v[:, :, idx_c, :].reshape(B, H, S, W, Dh)
        logits = torch.einsum("bhsd,bhswd->bhsw", q, kg) * scale
        logits = torch.where(mask[None, None, :, :], logits, -1e9)
        attn = _softmax(logits, axis=-1)
        o = torch.einsum("bhsw,bhswd->bhsd", attn, vg)
        return (lambda x, *d: x.permute(*d))(o, 0, 2, 1, 3).reshape(B, S, D) @ wo

    def _B_ref(x, w_gate, w_up, w_down):
        return (_gelu(x @ w_gate) * (x @ w_up)) @ w_down

    x = A_x
    xn = _layernorm(x, axis=-1)
    return x + _A_ref(xn, A_wqkv, A_wo) + _B_ref(xn, B_w_gate, B_w_up, B_w_down)
```

```python
class Asm:
    def __init__(self):
        self.L = []
        self._uid = 0
    def __call__(self, s, *more):
        self.L.append(s)
        self.L.extend(more)
    def extend(self, lst):
        for x in lst:
            if isinstance(x, (list, tuple)):
                self.extend(x)
            else:
                self.L.append(x)
    def label(self, name):
        self.L.append(name + ':')
    def uid(self, p='L'):
        self._uid += 1
        return f'{p}_{self._uid}'
    def text(self):
        out = []
        for l in self.L:
            if l.endswith(':') or l.startswith('.') or l.startswith(';'):
                out.append(l)
            else:
                out.append('    ' + l)
        return '\n'.join(out) + '\n'

def vr(base, n=1):
    return f'v{base}' if n == 1 else f'v[{base}:{base+n-1}]'
def ar(base, n=1):
    return f'a{base}' if n == 1 else f'a[{base}:{base+n-1}]'
def sr(base, n=1):
    return f's{base}' if n == 1 else f's[{base}:{base+n-1}]'

def interleave(mfmas, fillers, start=0, per_gap=None, end=None):
    n = len(mfmas)
    end = n if end is None else end
    gaps = [[] for _ in range(n)]
    nf = len(fillers)
    span = end - start
    for idx, f in enumerate(fillers):
        if per_gap is None:
            g = start + (idx * span) // max(nf, 1)
        else:
            g = min(start + idx // per_gap, end - 1)
        gaps[g].append(f)
    out = []
    for i, m in enumerate(mfmas):
        out.append(m)
        for f in gaps[i]:
            if isinstance(f, (list, tuple)):
                out.extend(f)
            else:
                out.append(f)
    return out

def kernel_header(name):
    return f""".text
.globl {name}
.p2align 8
.type {name},@function
{name}:
"""

def kernel_desc(name, vgpr, acc, sgpr=102, kernarg=80):
    return f""".section .rodata,"a"
.p2align 6
.amdhsa_kernel {name}
  .amdhsa_next_free_vgpr {vgpr}
  .amdhsa_next_free_sgpr {sgpr}
  .amdhsa_accum_offset {acc}
  .amdhsa_group_segment_fixed_size 0
  .amdhsa_kernarg_size {kernarg}
  .amdhsa_user_sgpr_count 2
  .amdhsa_user_sgpr_kernarg_segment_ptr 1
  .amdhsa_system_sgpr_workgroup_id_x 1
  .amdhsa_float_denorm_mode_32 3
.end_amdhsa_kernel
"""
```

```python
from asmlib import *

WS_XN = 0
WS_A2 = 4 << 20
A2_MB_STRIDE = 288 * 1024
WS_A2_SIZE = 64 * A2_MB_STRIDE
WS_DBG = 32 << 20
WS_TS = 48 << 20

def bf16_round(a, dst, src):
    a(f'v_cvt_pk_bf16_f32 v{dst}, v{src}, v{src}')
    a(f'v_lshlrev_b32 v{dst}, 16, v{dst}')

def wave_reduce_x8(a, v, t0, t1):
    a('s_nop 1')
    a(f'v_add_f32_dpp v{v}, v{v}, v{v} row_ror:8 row_mask:0xf bank_mask:0xf')
    a(f'v_mov_b32 v{t0}, v{v}')
    a(f'v_mov_b32 v{t1}, v{v}')
    a('s_nop 1')
    a(f'v_permlane16_swap_b32 v{t0}, v{t1}')
    a('s_nop 1')
    a(f'v_add_f32 v{v}, v{t0}, v{t1}')
    a(f'v_mov_b32 v{t0}, v{v}')
    a(f'v_mov_b32 v{t1}, v{v}')
    a('s_nop 1')
    a(f'v_permlane32_swap_b32 v{t0}, v{t1}')
    a('s_nop 1')
    a(f'v_add_f32 v{v}, v{t0}, v{t1}')

def gen_k0(name='ln_kernel'):
    a = Asm()
    a('s_cmp_ge_u32 s2, 256')
    a('s_cbranch_scc1 L_k0_end')
    a('s_load_dwordx2 s[4:5], s[0:1], 0')
    a('s_load_dwordx2 s[6:7], s[0:1], 72')
    a('v_and_b32 v1, 63, v0')
    a('v_lshrrev_b32 v2, 6, v0')
    a('v_and_b32 v3, 7, v1')
    a('v_lshrrev_b32 v4, 3, v1')
    a('v_lshl_add_u32 v5, v2, 3, v4')
    a('s_lshl_b32 s3, s2, 3')
    a('v_add_u32 v6, s3, v3')
    a('v_lshlrev_b32 v7, 11, v6')
    a('v_lshl_add_u32 v7, v5, 4, v7')
    a('s_waitcnt lgkmcnt(0)')
    a('s_mov_b32 s8, s4'); a('s_and_b32 s9, s5, 0xffff'); a('s_mov_b32 s10, 0x400000'); a('s_mov_b32 s11, 0x20000')
    a('s_add_u32 s12, s6, %d' % WS_XN); a('s_addc_u32 s13, s7, 0'); a('s_and_b32 s13, s13, 0xffff')
    a('s_mov_b32 s14, 0x400000'); a('s_mov_b32 s15, 0x20000')
    a('buffer_load_dwordx4 v[8:11], v7, s[8:11], 0 offen')
    a('buffer_load_dwordx4 v[12:15], v7, s[8:11], 0 offen offset:1024')
    a('v_lshrrev_b32 v16, 5, v6')
    a('v_lshlrev_b32 v16, 16, v16')
    a('v_bfe_u32 v17, v6, 4, 1')
    a('v_lshl_add_u32 v16, v17, 10, v16')
    a('v_and_b32 v17, 15, v6')
    a('v_lshl_add_u32 v16, v17, 4, v16')
    a('v_lshrrev_b32 v17, 2, v5')
    a('v_lshl_add_u32 v16, v17, 11, v16')
    a('v_and_b32 v17, 3, v5')
    a('v_lshl_add_u32 v16, v17, 8, v16')
    a('v_lshlrev_b32 v18, 5, v3')
    a('v_lshl_add_u32 v19, v2, 2, v18')
    a('s_waitcnt vmcnt(0)')
    for i in range(8):
        a(f'v_lshlrev_b32 v{20+2*i}, 16, v{8+i}')
        a(f'v_and_b32 v{21+2*i}, 0xffff0000, v{8+i}')
    a('v_add_f32 v40, v20, v21')
    for i in range(2, 16):
        a(f'v_add_f32 v40, v40, v{20+i}')
    wave_reduce_x8(a, 40, 41, 42)
    a('v_cmp_gt_u32 vcc, 8, v1')
    a('s_and_saveexec_b64 s[16:17], vcc')
    a('ds_write_b32 v19, v40')
    a('s_mov_b64 exec, s[16:17]')
    a('s_waitcnt lgkmcnt(0)')
    a('s_barrier')
    a('ds_read_b128 v[44:47], v18')
    a('ds_read_b128 v[48:51], v18 offset:16')
    a('s_waitcnt lgkmcnt(0)')
    a('v_add_f32 v40, v44, v45')
    for i in range(46, 52):
        a(f'v_add_f32 v40, v40, v{i}')
    a('v_mul_f32 v40, 0x3a800000, v40')
    a('v_sub_f32 v41, v20, v40')
    a('v_mul_f32 v43, v41, v41')
    for i in range(1, 16):
        a(f'v_sub_f32 v41, v{20+i}, v40')
        a('v_fmac_f32 v43, v41, v41')
    wave_reduce_x8(a, 43, 41, 42)
    a('v_cmp_gt_u32 vcc, 8, v1')
    a('s_and_saveexec_b64 s[16:17], vcc')
    a('ds_write_b32 v19, v43 offset:256')
    a('s_mov_b64 exec, s[16:17]')
    a('s_waitcnt lgkmcnt(0)')
    a('s_barrier')
    a('ds_read_b128 v[44:47], v18 offset:256')
    a('ds_read_b128 v[48:51], v18 offset:272')
    a('s_waitcnt lgkmcnt(0)')
    a('v_add_f32 v43, v44, v45')
    for i in range(46, 52):
        a(f'v_add_f32 v43, v43, v{i}')
    a('v_mul_f32 v43, 0x3a800000, v43')
    bf16_round(a, 40, 40)
    bf16_round(a, 43, 43)
    a('v_add_f32 v43, 0x3727c5ac, v43')
    bf16_round(a, 43, 43)
    a('v_sqrt_f32 v43, v43')
    a('s_nop 0')
    bf16_round(a, 43, 43)
    a('v_rcp_f32 v43, v43')
    a('s_nop 0')
    for i in range(16):
        a(f'v_sub_f32 v{20+i}, v{20+i}, v40')
    for i in range(8):
        a(f'v_cvt_pk_bf16_f32 v{8+i}, v{20+2*i}, v{21+2*i}')
    for i in range(8):
        a(f'v_lshlrev_b32 v{20+2*i}, 16, v{8+i}')
        a(f'v_and_b32 v{21+2*i}, 0xffff0000, v{8+i}')
    for i in range(16):
        a(f'v_mul_f32 v{20+i}, v{20+i}, v43')
    for i in range(8):
        a(f'v_cvt_pk_bf16_f32 v{8+i}, v{20+2*i}, v{21+2*i}')
    a('v_add_u32 v17, 0x8000, v16')
    a('buffer_store_dwordx4 v[8:11], v16, s[12:15], 0 offen')
    a('buffer_store_dwordx4 v[12:15], v17, s[12:15], 0 offen')
    a.label('L_k0_end')
    a('s_endpgm')
    return kernel_header(name) + a.text(), kernel_desc(name, 64, 64)
```

```python
from asmlib import *
from sched import Sched
from k0 import WS_XN, WS_A2, A2_MB_STRIDE, WS_A2_SIZE, WS_DBG, WS_TS
import math, struct

ASTAGE = 17408
WBASE = 4 * ASTAGE
WCOL = 16384
LDS_K1 = WBASE + 5 * WCOL

V_LANE = 0
V_ADMA, V_WDMA, V_ODMA = 1, 2, 3
V_A, V_AH = 4, 5
V_W = 6
V_ST = 11
V_T = 12
V_HACC = 36
V_ACC = 40
def acc(j, i): return V_ACC + (4 * j + i) * 4
A_WR = 0
A_X = (16, 32)
A_XH = (48, 52)
def wring(G): return A_WR + 4 * (G % 4)

S_XN, S_WM, S_OPT, S_OUT = 12, 16, 20, 24
S_W, S_WMI, S_WNI, S_MT, S_NT = 28, 29, 30, 31, 32
S_SOA, S_SOW, S_SOW2, S_SOO, S_INCW, S_INCO = 33, 34, 35, 36, 37, 38
S_M0A, S_M0W = 39, 40
S_M0O = 41
S_CNT = 45
S_T = 46
S_TS = 60
S_KO0, S_KO1 = 70, 71

PITCH_QKV, PITCH_F = 6144, 7168
NST = 32

class Variant:
    def __init__(self, typ, halo, opt):
        self.typ = typ
        self.halo = halo
        self.opt = opt
        self.ndma = 4 + (1 if opt else 0)
        self.name = f'{typ}_{halo if halo is not None else "n"}_{int(opt)}'

def mfma16(d, x, y, c=None):
    c = f'v[{d}:{d+3}]' if c is None else c
    return f'v_mfma_f32_16x16x32_bf16 v[{d}:{d+3}], {x}, {y}, {c}'

def w_read(var, j, slot, G):
    r = wring(G)
    if var.typ == 'X':
        c = j // 2; b = j % 2
        if c < 4: base = V_W + b; off = c * WCOL
        else:     base = V_W + 2 + b; off = 0
        off += slot * 4096; tstep = 512
    else:
        if j < 8:
            base = V_W + (j % 4); off = (j // 4) * WCOL + slot * 4096; tstep = 512
        else:
            base = V_W + 4; off = slot * 4096 + (j - 8) * 2048; tstep = 256
    return [f'ds_read_b64_tr_b16 {ar(r,2)}, v{base} offset:{off}',
            f'ds_read_b64_tr_b16 {ar(r+2,2)}, v{base} offset:{off+tstep}']

def x_read(var, i, slot, st):
    return f'ds_read_b128 {ar(A_X[st]+4*i,4)}, v{V_A} offset:{slot*ASTAGE + i*1024}'
def xh_read(var, slot, st):
    return f'ds_read_b128 {ar(A_XH[st],4)}, v{V_AH} offset:{slot*ASTAGE}'

def dma_list(var, slot):
    D = []
    D.append((f's_add_u32 m0, s{S_M0A}, {slot*ASTAGE}',
              f'buffer_load_dwordx4 v{V_ADMA}, s[{S_XN}:{S_XN+3}], s{S_SOA} offen lds', None))
    D.append((None,
              f'buffer_load_dwordx4 v{V_ADMA}, s[{S_XN}:{S_XN+3}], s{S_SOA} offen offset:1024 lds',
              f's_add_u32 s{S_SOA}, s{S_SOA}, 2048'))
    D.append((f's_add_u32 m0, s{S_M0W}, {slot*4096}',
              f'buffer_load_dwordx4 v{V_WDMA}, s[{S_WM}:{S_WM+3}], s{S_SOW} offen lds',
              f's_add_u32 s{S_SOW}, s{S_SOW}, s{S_INCW}'))
    D.append((f's_add_u32 m0, s{S_M0W}, {slot*4096+2048}',
              f'buffer_load_dwordx4 v{V_WDMA}, s[{S_WM}:{S_WM+3}], s{S_SOW2} offen lds',
              f's_add_u32 s{S_SOW2}, s{S_SOW2}, s{S_INCW}'))
    if var.opt:
        D.append((f's_mov_b32 m0, s{S_M0O+slot}',
                  f'buffer_load_dwordx4 v{V_ODMA}, s[{S_OPT}:{S_OPT+3}], s{S_SOO} offen lds',
                  f's_add_u32 s{S_SOO}, s{S_SOO}, s{S_INCO}'))
    return D

def gen_mainloop(a, var, opt):
    lab = f'L_loop_{var.name}'
    nomf = opt.get('no_mfma'); nodma = opt.get('no_dma')
    if not nodma:
        for slot in range(3):
            for (pre, ld, post) in dma_list(var, slot):
                if pre: a(pre); a('s_nop 0')
                a(ld)
                if post: a(post)
    for r in range(V_HACC, V_ACC + 160):
        a(f'v_mov_b32 v{r}, 0')
    a(f's_waitcnt vmcnt({2*var.ndma})')
    a('s_barrier')
    if opt.get('ts'):
        a(f's_memtime s[{S_TS+2}:{S_TS+3}]'); a('s_memrealtime s[74:75]'); a('s_waitcnt lgkmcnt(0)')
    S = Sched()
    XG = opt.get('x_groups', [3, 4, 5, 6])
    HG = opt.get('xh_group', 2)
    def preread_x(st_next, grp):
        out = []
        slot = st_next % 4; st = st_next % 2
        for i in range(4):
            if XG[i] == grp: out.append((x_read(var, i, slot, st), ('x', st_next, i)))
        if var.halo is not None and HG == grp:
            out.append((xh_read(var, slot, st), ('xh', st_next)))
        return out
    S.mark('pro')
    for grp in range(10):
        if grp >= 7:
            for q, t in enumerate(w_read(var, grp - 7, 0, grp - 7)):
                S.read(t, ('w', 0, grp - 7))
        for (t, tag) in preread_x(0, grp): S.read(t, tag)
    S.op(f's_waitcnt vmcnt({var.ndma})')
    S.op('s_barrier')
    dstart = opt.get('dma_group0', 0)
    for st in range(NST):
        S.mark(f'st{st}')
        slot = st % 4; xs = st % 2
        dm = dma_list(var, (st + 3) % 4) if (st + 3 < NST and not nodma) else []
        for j in range(10):
            G = 10 * st + j
            fill = [[] for _ in range(4)]
            jn = j + 3
            if jn < 10: wr = [(t, ('w', st, jn)) for t in w_read(var, jn, slot, G + 3)]
            elif st + 1 < NST: wr = [(t, ('w', st + 1, jn - 10)) for t in w_read(var, jn - 10, (st + 1) % 4, G + 3)]
            else: wr = []
            for q, x in enumerate(wr): fill[q].append(('r', x))
            if st + 1 < NST:
                for x in preread_x(st + 1, j): fill[2].append(('r', x))
            di = j - dstart
            if 0 <= di < len(dm):
                pre, ld, post = dm[di]
                if pre: fill[2].append(('o', pre))
                fill[3].append(('o', ld))
                if post: fill[3].append(('o', post))
            W = ar(wring(G), 4)
            for i in range(4):
                X = ar(A_X[xs] + 4 * i, 4)
                needs = [('w', st, j), ('x', st, i)]
                if var.typ == 'X' and j in (4, 5): t = mfma16(acc(j, i), X, W)
                else: t = mfma16(acc(j, i), W, X)
                if nomf: t = 's_nop 0'
                S.op(t, needs)
                if i == 1 and var.halo == j:
                    XH = ar(A_XH[xs], 4)
                    t = mfma16(V_HACC, XH, W) if j in (4, 5) else mfma16(V_HACC, W, XH)
                    S.op('s_nop 0' if nomf else t, [('xh', st)])
                for kind, x in fill[i]:
                    if kind == 'r': S.read(x[0], x[1])
                    else: S.op(x)
        if st + 3 < NST: S.op(f's_waitcnt vmcnt({0 if nodma else var.ndma})')
        elif st + 2 < NST: S.op('s_waitcnt vmcnt(0)')
        if not opt.get('no_barrier') or st == NST - 1: S.op('s_barrier')
    segs = S.finalize()
    for k in range(1, 7):
        for s in range(4):
            assert segs[f'st{4*k+s}'] == segs[f'st{s}'], (k, s)
    a.extend(segs['pro'])
    a(f's_mov_b32 s{S_CNT}, 7')
    a('.p2align 3')
    a.label(lab)
    for s in range(4): a.extend(segs[f'st{s}'])
    a(f's_sub_u32 s{S_CNT}, s{S_CNT}, 1')
    a(f's_cmp_lg_u32 s{S_CNT}, 0')
    a(f's_cbranch_scc1 {lab}')
    for s in range(28, 32): a.extend(segs[f'st{s}'])

C1 = -2.0 * math.sqrt(2.0 / math.pi) * math.log2(math.e)
C2 = C1 * 0.044715
def fbits(x): return '0x%08x' % struct.unpack('<I', struct.pack('<f', x))[0]
S_C2 = 56
V_C1 = 12
V_ONE = 14
V_G = 16

def p2(r): return f'v[{r}:{r+1}]'

def gelu_pair(a, tiles, dst, tmp=V_G):
    n = len(tiles)
    T = [(tmp + 4 * q) for q in range(n)]
    for q, (G, U) in enumerate(tiles):
        for h in (0, 2): a(f'v_pk_mul_f32 {p2(T[q]+h)}, {p2(G+h)}, {p2(G+h)}')
    for q, (G, U) in enumerate(tiles):
        for h in (0, 2): a(f'v_pk_fma_f32 {p2(T[q]+h)}, {p2(T[q]+h)}, s[{S_C2}:{S_C2+1}], {p2(V_C1)}')
    for q, (G, U) in enumerate(tiles):
        for h in (0, 2): a(f'v_pk_mul_f32 {p2(T[q]+h)}, {p2(T[q]+h)}, {p2(G+h)}')
    for q, (G, U) in enumerate(tiles):
        for e in range(4): a(f'v_exp_f32 v{T[q]+e}, v{T[q]+e}')
    for q, (G, U) in enumerate(tiles):
        for h in (0, 2): a(f'v_pk_mul_f32 {p2(U+h)}, {p2(U+h)}, {p2(G+h)}')
    for q, (G, U) in enumerate(tiles):
        for h in (0, 2): a(f'v_pk_add_f32 {p2(T[q]+h)}, {p2(T[q]+h)}, {p2(V_ONE)}')
    for q, (G, U) in enumerate(tiles):
        for e in range(4): a(f'v_rcp_f32 v{T[q]+e}, v{T[q]+e}')
    a('s_nop 0')
    for q, (G, U) in enumerate(tiles):
        for h in (0, 2): a(f'v_pk_mul_f32 {p2(U+h)}, {p2(U+h)}, {p2(T[q]+h)}')
    for q, (G, U) in enumerate(tiles):
        a(f'v_cvt_pk_bf16_f32 v{dst+2*q}, v{U}, v{U+1}')
        a(f'v_cvt_pk_bf16_f32 v{dst+2*q+1}, v{U+2}, v{U+3}')

def store4(a, vdata, soff):
    a(f'buffer_store_dwordx4 v[{vdata}:{vdata+3}], v{V_ST}, s[{S_OUT}:{S_OUT+3}], s{soff} offen')

def epi_common(a):
    a('s_nop 15')
    a(f's_mov_b32 s{S_C2}, {fbits(C2)}'); a(f's_mov_b32 s{S_C2+1}, {fbits(C2)}')
    a(f'v_mov_b32 v{V_C1}, {fbits(C1)}'); a(f'v_mov_b32 v{V_C1+1}, {fbits(C1)}')
    a(f'v_mov_b32 v{V_ONE}, 1.0'); a(f'v_mov_b32 v{V_ONE+1}, 1.0')
    a(f'v_lshlrev_b32 v{V_ST}, 4, v{V_LANE}')
    a(f's_lshl_b32 s{S_T}, s{S_MT}, 3')
    a(f's_lshl_b32 s{S_T+1}, s{S_WMI}, 1')
    a(f's_add_u32 s{S_T}, s{S_T}, s{S_T+1}')
    a(f's_mul_i32 s{S_T+2}, s{S_T}, {A2_MB_STRIDE}')

def ioff(i): return (i >> 1) * A2_MB_STRIDE + (i & 1) * 1024

def gen_epilogue(a, typ, opt):
    epi_common(a)
    if typ == 'Y':
        for i in range(4):
            for fr in range(2):
                G0, G1 = acc(2*fr, i), acc(2*fr+1, i); U0, U1 = acc(4+2*fr, i), acc(5+2*fr, i)
                gelu_pair(a, [(G0, U0), (G1, U1)], G0)
                a(f's_add_u32 s{S_T+5}, s{S_T+2}, s{S_KO0}')
                a(f's_add_u32 s{S_T+5}, s{S_T+5}, {fr*2048 + ioff(i)}')
                store4(a, G0, S_T + 5)
        a(f's_lshl_b32 s{S_T+6}, s{S_WNI}, 3')
        a(f's_add_u32 s{S_KO1}, s{S_KO1}, s{S_T+6}')
        for i in (0, 2):
            gelu_pair(a, [(acc(8, i), acc(9, i)), (acc(8, i+1), acc(9, i+1))], acc(8, i))
            for q in range(2):
                a(f's_add_u32 s{S_T+5}, s{S_T+2}, s{S_KO1}')
                a(f's_add_u32 s{S_T+5}, s{S_T+5}, {ioff(i+q)}')
                d = acc(8, i) + 2*q
                a(f'buffer_store_dwordx2 v[{d}:{d+1}], v{V_ST}, s[{S_OUT}:{S_OUT+3}], s{S_T+5} offen')
    else:
        if not opt.get('no_attn'):
            gen_attention_head(a, opt)
        for i in range(4):
            gelu_pair(a, [(acc(6, i), acc(8, i)), (acc(7, i), acc(9, i))], acc(6, i))
            a(f's_add_u32 s{S_T+5}, s{S_T+2}, s{S_KO0}')
            a(f's_add_u32 s{S_T+5}, s{S_T+5}, {ioff(i)}')
            store4(a, acc(6, i), S_T + 5)
        if not opt.get('no_attn'):
            gen_attention_tail(a, opt)

XCH = 0
S_PAR, S_MC0, S_MC1, S_MP0, S_MP1, S_MQ0, S_MQ1 = 80, 82, 84, 86, 88, 90, 92
S_SC = 58
V_SEL0, V_SEL1, V_NEG, V_XA = 32, 33, 34, 35
def sp(r): return f's[{r}:{r+1}]'

def gen_attention_head(a, opt):
    a(f'v_lshlrev_b32 v{V_XA}, 3, v{V_LANE}')
    a(f's_lshl_b32 s{S_T+3}, s{S_WNI}, 13')
    a(f'v_add_u32 v{V_XA}, s{S_T+3}, v{V_XA}')
    a(f'v_cvt_pk_bf16_f32 v16, v{V_HACC}, v{V_HACC+1}')
    a(f'v_cvt_pk_bf16_f32 v17, v{V_HACC+2}, v{V_HACC+3}')
    a(f's_lshl_b32 s{S_T+3}, s{S_WMI}, 9')
    a(f'v_add_u32 v18, s{S_T+3}, v{V_XA}')
    a(f'ds_write_b64 v18, v[16:17] offset:{XCH}')
    for p, j in enumerate((2, 3, 4, 5)):
        A = acc(j, 3)
        a(f'v_cvt_pk_bf16_f32 v{20+2*p}, v{A}, v{A+1}')
        a(f'v_cvt_pk_bf16_f32 v{21+2*p}, v{A+2}, v{A+3}')
    a(f's_lshl_b32 s{S_T+3}, s{S_WMI}, 11')
    a(f'v_add_u32 v{V_XA}, s{S_T+3}, v{V_XA}')
    a(f's_cmp_eq_u32 s{S_WMI}, 3')
    a('s_cbranch_scc1 L_k1_noxw')
    for p in range(4):
        a(f'ds_write_b64 v{V_XA}, v[{20+2*p}:{21+2*p}] offset:{XCH + 2048 + p*512}')
    a.label('L_k1_noxw')
    a('s_waitcnt lgkmcnt(0)')
    a('s_barrier')

def gen_attention_tail(a, opt):
    VA = (168, 178)
    KP = 188
    ONES = 192
    L = V_LANE
    a(f'ds_read_b64 v[{KP}:{KP+1}], v{V_XA} offset:{XCH}')
    a(f'ds_read_b64 v[{KP+2}:{KP+3}], v{V_XA} offset:{XCH+512}')
    a(f'ds_read_b64 v[{VA[0]}:{VA[0]+1}], v{V_XA} offset:{XCH+1024}')
    a(f'ds_read_b64 v[{VA[1]}:{VA[1]+1}], v{V_XA} offset:{XCH+1536}')
    a(f'v_and_b32 v16, 15, v{L}')
    a(f'v_lshrrev_b32 v17, 4, v{L}')
    a(f'v_and_b32 v18, 1, v{L}')
    a(f'v_cmp_eq_u32 {sp(S_PAR)}, 1, v18')
    a('v_lshl_add_u32 v17, v17, 2, v18')
    a('v_add_u32 v19, 2, v17')
    a(f'v_cmp_le_u32 {sp(S_MC0)}, v17, v16')
    a(f'v_cmp_le_u32 {sp(S_MC1)}, v19, v16')
    a('v_add_u32 v16, 2, v16')
    a(f'v_cmp_ge_u32 {sp(S_MP0)}, v17, v16')
    a(f'v_cmp_ge_u32 {sp(S_MP1)}, v19, v16')
    a(f's_or_b32 s{S_T+3}, s{S_MT}, s{S_WMI}')
    a(f's_cmp_eq_u32 s{S_T+3}, 0')
    a('s_nop 1')
    a(f's_cselect_b64 {sp(S_MQ0)}, 0, {sp(S_MP0)}')
    a(f's_cselect_b64 {sp(S_MQ1)}, 0, {sp(S_MP1)}')
    a(f'v_mov_b32 v{V_SEL0}, 0x0c0c0100'); a('v_mov_b32 v16, 0x01000c0c')
    a(f'v_cndmask_b32 v{V_SEL0}, v{V_SEL0}, v16, {sp(S_PAR)}')
    a(f'v_mov_b32 v{V_SEL1}, 0x0c0c0302'); a('v_mov_b32 v16, 0x03020c0c')
    a(f'v_cndmask_b32 v{V_SEL1}, v{V_SEL1}, v16, {sp(S_PAR)}')
    a(f'v_mov_b32 v{V_NEG}, 0xff000000')
    a(f's_mov_b32 s{S_SC}, {fbits(32 ** -0.5 * math.log2(math.e))}')
    for q in range(4): a(f'v_mov_b32 v{ONES+q}, 0x3f803f80')
    for i in range(4):
        for j0 in (0, 2):
            A, B = acc(j0, i), acc(j0 + 1, i)
            a(f'v_cvt_pk_bf16_f32 v{A}, v{A}, v{A+1}')
            a(f'v_cvt_pk_bf16_f32 v{A+1}, v{A+2}, v{A+3}')
            a(f'v_cvt_pk_bf16_f32 v{A+2}, v{B}, v{B+1}')
            a(f'v_cvt_pk_bf16_f32 v{A+3}, v{B+2}, v{B+3}')
        for b in range(2):
            A = acc(4 + b, i); D = VA[b] + 2 + 2 * i
            a(f'v_cvt_pk_bf16_f32 v{D}, v{A}, v{A+1}')
            a(f'v_cvt_pk_bf16_f32 v{D+1}, v{A+2}, v{A+3}')
    a('s_waitcnt lgkmcnt(0)')
    a('s_nop 1')
    def t4(r): return f'v[{r}:{r+3}]'
    SC = [acc(1, i) for i in range(4)]; SP = [acc(3, i) for i in range(4)]
    for i in range(4):
        a(mfma16(SC[i], t4(acc(2, i)), t4(acc(0, i)), '0'))
        kp = KP if i == 0 else acc(2, i - 1)
        a(mfma16(SP[i], t4(kp), t4(acc(0, i)), '0'))
    a('s_nop 7')
    for i in range(4):
        for T in (SC[i], SP[i]):
            a(f'v_cndmask_b32 v{T}, v{T}, v{T+1}, {sp(S_PAR)}')
            a(f'v_cndmask_b32 v{T+1}, v{T+2}, v{T+3}, {sp(S_PAR)}')
    for i in range(4):
        m0, m1 = (S_MQ0, S_MQ1) if i == 0 else (S_MP0, S_MP1)
        a(f'v_cndmask_b32 v{SC[i]}, v{V_NEG}, v{SC[i]}, {sp(S_MC0)}')
        a(f'v_cndmask_b32 v{SC[i]+1}, v{V_NEG}, v{SC[i]+1}, {sp(S_MC1)}')
        a(f'v_cndmask_b32 v{SP[i]}, v{V_NEG}, v{SP[i]}, {sp(m0)}')
        a(f'v_cndmask_b32 v{SP[i]+1}, v{V_NEG}, v{SP[i]+1}, {sp(m1)}')
    M = [SC[i] + 2 for i in range(4)]; T2 = [SC[i] + 3 for i in range(4)]
    for i in range(4): a(f'v_max3_f32 v{M[i]}, v{SC[i]}, v{SC[i]+1}, v{SP[i]}')
    for i in range(4): a(f'v_max_f32 v{M[i]}, v{M[i]}, v{SP[i]+1}')
    for swap in ('v_permlane16_swap_b32', 'v_permlane32_swap_b32'):
        for i in range(4): a(f'v_mov_b32 v{T2[i]}, v{M[i]}')
        a('s_nop 0')
        for i in range(4): a(f'{swap} v{M[i]}, v{T2[i]}')
        a('s_nop 0')
        for i in range(4): a(f'v_max_f32 v{M[i]}, v{M[i]}, v{T2[i]}')
    for i in range(4): a(f'v_mul_f32 v{M[i]}, s{S_SC}, v{M[i]}')
    for i in range(4):
        for r in (SC[i], SC[i] + 1, SP[i], SP[i] + 1):
            a(f'v_fma_f32 v{r}, v{r}, s{S_SC}, -v{M[i]}')
    for i in range(4):
        for r in (SC[i], SC[i] + 1, SP[i], SP[i] + 1):
            a(f'v_exp_f32 v{r}, v{r}')
    a('s_nop 0')
    for i in range(4):
        a(f'v_cvt_pk_bf16_f32 v{SP[i]+2}, v{SP[i]}, v{SP[i]+1}')
        a(f'v_cvt_pk_bf16_f32 v{SP[i]+3}, v{SC[i]}, v{SC[i]+1}')
    for i in range(4):
        P = acc(0, i)
        a(f'v_perm_b32 v{P}, v{SP[i]+2}, v{SP[i]+2}, v{V_SEL0}')
        a(f'v_perm_b32 v{P+1}, v{SP[i]+2}, v{SP[i]+2}, v{V_SEL1}')
        a(f'v_perm_b32 v{P+2}, v{SP[i]+3}, v{SP[i]+3}, v{V_SEL0}')
        a(f'v_perm_b32 v{P+3}, v{SP[i]+3}, v{SP[i]+3}, v{V_SEL1}')
    a('s_nop 1')
    O0 = [acc(4, i) for i in range(4)]; O1 = [acc(5, i) for i in range(4)]; SM = [acc(2, i) for i in range(4)]
    for i in range(4):
        a(mfma16(SM[i], t4(ONES), t4(acc(0, i)), '0'))
        a(mfma16(O0[i], t4(VA[0] + 2 * i), t4(acc(0, i)), '0'))
        a(mfma16(O1[i], t4(VA[1] + 2 * i), t4(acc(0, i)), '0'))
    a('s_nop 7')
    for i in range(4): a(f'v_rcp_f32 v{SM[i]}, v{SM[i]}')
    a('s_nop 0')
    for i in range(4):
        for T in (O0[i], O1[i]):
            for r in range(4): a(f'v_mul_f32 v{T+r}, v{T+r}, v{SM[i]}')
    a(f's_lshl_b32 s{S_T+6}, s{S_NT}, 1')
    a(f's_add_u32 s{S_T+6}, s{S_T+6}, s{S_WNI}')
    a(f's_lshl_b32 s{S_T+6}, s{S_T+6}, 11')
    a(f's_add_u32 s{S_T+6}, s{S_T+6}, s{S_T+2}')
    for i in range(4):
        D = SC[i]
        a(f'v_cvt_pk_bf16_f32 v{D}, v{O0[i]}, v{O0[i]+1}')
        a(f'v_cvt_pk_bf16_f32 v{D+1}, v{O0[i]+2}, v{O0[i]+3}')
        a(f'v_cvt_pk_bf16_f32 v{D+2}, v{O1[i]}, v{O1[i]+1}')
        a(f'v_cvt_pk_bf16_f32 v{D+3}, v{O1[i]+2}, v{O1[i]+3}')
        a(f's_add_u32 s{S_T+5}, s{S_T+6}, {ioff(i)}')
        store4(a, D, S_T + 5)

def gen_k1(opt, name='gemm1_kernel'):
    a = Asm()
    a('s_cmp_ge_u32 s2, 256')
    a('s_cbranch_scc1 L_k1_end')
    if opt.get('ts'):
        a(f's_memtime s[{S_TS}:{S_TS+1}]')
        a('s_memrealtime s[72:73]')
    a('s_load_dwordx2 s[4:5], s[0:1], 8')
    a('s_load_dwordx4 s[8:11], s[0:1], 32')
    a('s_load_dwordx2 s[6:7], s[0:1], 72')
    a('v_lshrrev_b32 v12, 6, v0')
    a(f'v_and_b32 v{V_LANE}, 63, v0')
    a('s_nop 0')
    a(f'v_readfirstlane_b32 s{S_W}, v12')
    a('s_and_b32 s46, s2, 7')
    a('s_lshr_b32 s47, s2, 3')
    a(f's_lshr_b32 s{S_MT}, s47, 2')
    a('s_and_b32 s47, s47, 3')
    a('s_lshl_b32 s46, s46, 2')
    a('s_add_u32 s46, s46, s47')
    a(f's_lshr_b32 s{S_NT}, s46, 1')
    a('s_and_b32 s48, s46, 1')
    a(f's_and_b32 s{S_WMI}, s{S_W}, 3')
    a(f's_lshr_b32 s{S_WNI}, s{S_W}, 2')
    a('s_waitcnt lgkmcnt(0)')
    a(f's_add_u32 s{S_XN}, s6, {WS_XN}'); a(f's_addc_u32 s{S_XN+1}, s7, 0'); a(f's_and_b32 s{S_XN+1}, s{S_XN+1}, 0xffff')
    a(f's_mov_b32 s{S_XN+2}, 0x400000'); a(f's_mov_b32 s{S_XN+3}, 0x20000')
    a(f's_add_u32 s{S_OUT}, s6, {WS_A2}'); a(f's_addc_u32 s{S_OUT+1}, s7, 0'); a(f's_and_b32 s{S_OUT+1}, s{S_OUT+1}, 0xffff')
    a(f's_mov_b32 s{S_OUT+2}, {(64<<20) if (opt.get("dbg_qkv") or opt.get("ts")) else WS_A2_SIZE}'); a(f's_mov_b32 s{S_OUT+3}, 0x20000')
    L = V_LANE
    a(f's_lshl_b32 s49, s{S_MT}, 3')
    a(f's_add_u32 s49, s49, s{S_W}')
    a('s_lshl_b32 s49, s49, 16')
    a(f'v_lshlrev_b32 v12, 4, v{L}')
    a(f'v_add_u32 v{V_ADMA}, s49, v12')
    a(f's_lshl_b32 s{S_M0A}, s{S_W}, 11')
    a(f's_mov_b32 s{S_SOA}, 0')
    a(f's_lshl_b32 s49, s{S_WMI}, 12')
    a(f'v_add_u32 v{V_A}, s49, v12')
    a(f'v_add_u32 v{V_AH}, 16384, v12')
    a(f'v_lshrrev_b32 v13, 4, v{L}')
    a(f'v_bfe_u32 v15, v{L}, 2, 2')
    a(f'v_and_b32 v16, 3, v{L}')
    a('v_lshlrev_b32 v17, 10, v13')
    a('v_lshl_add_u32 v17, v15, 7, v17')
    a('v_lshl_add_u32 v17, v16, 3, v17')
    a(f'v_add_u32 v17, {WBASE}, v17')
    a('v_lshrrev_b32 v18, 1, v15')
    a('v_and_b32 v14, 1, v13')
    a('v_lshl_or_b32 v18, v14, 1, v18')
    a(f'v_lshrrev_b32 v19, 3, v{L}')
    a(f'v_bfe_u32 v20, v{L}, 1, 2')
    a('v_bfe_u32 v21, v19, 1, 1')
    a('v_xor_b32 v20, v20, v21')
    a(f'v_and_b32 v21, 1, v{L}')
    a('s_cmp_eq_u32 s48, 1')
    a('s_cbranch_scc1 L_k1_setupY')

    def line_voff(dst, pitch_s, col_s, kg_s):
        a(f's_lshl_b32 s54, s{kg_s}, 3')
        a(f'v_add_u32 v22, s54, v19')
        a(f'v_mul_lo_u32 v22, v22, s{pitch_s}')
        a(f's_and_b32 s54, s{kg_s}, 1'); a('s_lshl_b32 s54, s54, 1')
        a(f'v_xor_b32 v23, s54, v20')
        a('v_lshl_add_u32 v22, v23, 5, v22')
        a('v_lshl_add_u32 v22, v21, 4, v22')
        a(f'v_add_u32 v{dst}, s{col_s}, v22')

    def set_srd(dst, srcpair, size):
        a(f's_mov_b32 s{dst}, s{srcpair}'); a(f's_and_b32 s{dst+1}, s{srcpair+1}, 0xffff')
        a(f's_mov_b32 s{dst+2}, {size}'); a(f's_mov_b32 s{dst+3}, 0x20000')

    SZQ, SZF = 1024 * PITCH_QKV, 1024 * PITCH_F
    a(f's_lshr_b32 s49, s{S_W}, 1')
    a(f's_and_b32 s50, s{S_W}, 1')
    a(f's_lshl_b32 s51, s{S_NT}, 7')
    a('s_cmp_eq_u32 s49, 3')
    a('s_cbranch_scc1 L_k1_Xgate')
    set_srd(S_WM, 4, SZQ)
    a('s_lshl_b32 s52, s49, 11')
    a('s_add_u32 s51, s51, s52')
    a(f's_mov_b32 s53, {PITCH_QKV}')
    a('s_branch L_k1_Xg2')
    a.label('L_k1_Xgate')
    set_srd(S_WM, 8, SZF)
    a(f's_mov_b32 s53, {PITCH_F}')
    a.label('L_k1_Xg2')
    line_voff(V_WDMA, 53, 51, 50)
    a(f's_lshl_b32 s{S_INCW}, s53, 5')
    a(f's_mov_b32 s{S_SOW}, 0')
    a(f's_lshl_b32 s{S_SOW2}, s53, 4')
    a(f's_lshl_b32 s52, s49, 14')
    a('s_lshl_b32 s54, s50, 10')
    a('s_add_u32 s52, s52, s54')
    a(f's_add_u32 s{S_M0W}, s52, {WBASE}')
    a(f's_cmp_eq_u32 s{S_W}, 4')
    a('s_cbranch_scc1 L_k1_Xhalo')
    a(f's_cmp_eq_u32 s{S_W}, 5')
    a(f's_cselect_b32 s50, 3, s{S_W}')
    a('s_and_b32 s50, s50, 3')
    set_srd(S_OPT, 10, SZF)
    a(f's_lshl_b32 s51, s{S_NT}, 7')
    a(f's_mov_b32 s53, {PITCH_F}')
    line_voff(V_ODMA, 53, 51, 50)
    a(f's_mov_b32 s{S_INCO}, {32*PITCH_F}')
    a(f's_mov_b32 s{S_SOO}, 0')
    a('s_lshl_b32 s54, s50, 10')
    for sl in range(4):
        a(f's_add_u32 s{S_M0O+sl}, s54, {WBASE + 4*WCOL + sl*4096}')
    a('s_branch L_k1_Xrd')
    a.label('L_k1_Xhalo')
    for q in range(4):
        a(f's_mov_b32 s{S_OPT+q}, s{S_XN+q}')
    a(f's_lshl_b32 s51, s{S_MT}, 3')
    a('s_sub_u32 s51, s51, 1')
    a('s_max_i32 s51, s51, 0')
    a('s_lshl_b32 s51, s51, 16')
    a('s_add_u32 s51, s51, 1024')
    a(f'v_add_u32 v{V_ODMA}, s51, v12')
    a(f's_mov_b32 s{S_INCO}, 2048')
    a(f's_mov_b32 s{S_SOO}, 0')
    for sl in range(4):
        a(f's_mov_b32 s{S_M0O+sl}, {sl*ASTAGE + 16384}')
    a.label('L_k1_Xrd')
    a(f's_lshl_b32 s49, s{S_WNI}, 1')
    for b in range(2):
        a(f's_add_u32 s50, s49, {b}')
        a('v_xor_b32 v21, s50, v18')
        a(f'v_lshl_add_u32 v{V_W+b}, v21, 5, v17')
        a(f'v_add_u32 v{V_W+2+b}, {4*WCOL}, v{V_W+b}')
    a(f's_lshl_b32 s{S_KO0}, s{S_NT}, 1')
    a(f's_add_u32 s{S_KO0}, s{S_KO0}, s{S_WNI}')
    a(f's_add_u32 s{S_KO0}, s{S_KO0}, 32')
    a(f's_lshl_b32 s{S_KO0}, s{S_KO0}, 11')
    XV = [(0, 2, True), (1, 3, True), (2, 4, True), (3, 5, False), (4, 2, True), (5, 3, True), (6, 4, False), (7, 5, False)]
    uniq = {}
    for (w, hj, o) in XV: uniq.setdefault((hj, o), []).append(w)
    for (hj, o), ws in uniq.items():
        for w in ws:
            a(f's_cmp_eq_u32 s{S_W}, {w}'); a(f's_cbranch_scc1 L_k1_X_{hj}_{int(o)}')
    for (hj, o), ws in uniq.items():
        a.label(f'L_k1_X_{hj}_{int(o)}')
        gen_mainloop(a, Variant('X', hj, o), opt)
        a('s_branch L_k1_epiX')
    a.label('L_k1_epiX')
    if opt.get('ts'):
        a(f's_memtime s[{S_TS+4}:{S_TS+5}]'); a('s_memrealtime s[76:77]')
    gen_epilogue(a, 'X', opt)
    a('s_branch L_k1_fin')

    a.label('L_k1_setupY')
    a(f's_mul_i32 s49, s{S_NT}, 320')
    a('s_add_u32 s49, s49, 2048')
    a(f's_and_b32 s50, s{S_NT}, 1')
    a('s_cmp_eq_u32 s50, 0')
    a('s_cselect_b32 s51, 0, 64')
    a('s_cselect_b32 s52, 256, 0')
    a('s_add_u32 s58, s49, s51')
    a('s_add_u32 s59, s49, s52')
    a(f's_lshr_b32 s49, s{S_W}, 1')
    a(f's_and_b32 s50, s{S_W}, 1')
    a('s_and_b32 s55, s49, 1')
    a('s_lshr_b32 s51, s49, 1')
    a('s_lshl_b32 s51, s51, 7')
    a('s_add_u32 s51, s51, s58')
    a('s_cmp_eq_u32 s55, 1')
    a('s_cselect_b32 s52, s10, s8')
    a('s_cselect_b32 s53, s11, s9')
    a(f's_mov_b32 s{S_WM}, s52'); a(f's_and_b32 s{S_WM+1}, s53, 0xffff')
    a(f's_mov_b32 s{S_WM+2}, {SZF}'); a(f's_mov_b32 s{S_WM+3}, 0x20000')
    a(f's_mov_b32 s53, {PITCH_F}')
    line_voff(V_WDMA, 53, 51, 50)
    a(f's_mov_b32 s{S_INCW}, {32*PITCH_F}')
    a(f's_mov_b32 s{S_SOW}, 0')
    a(f's_mov_b32 s{S_SOW2}, {16*PITCH_F}')
    a(f's_lshl_b32 s52, s49, 14')
    a('s_lshl_b32 s54, s50, 10')
    a('s_add_u32 s52, s52, s54')
    a(f's_add_u32 s{S_M0W}, s52, {WBASE}')
    a(f's_and_b32 s55, s{S_W}, 1')
    a(f's_bfe_u32 s50, s{S_W}, 0x10001')
    a('s_cmp_eq_u32 s55, 1')
    a('s_cselect_b32 s52, s10, s8')
    a('s_cselect_b32 s53, s11, s9')
    a(f's_mov_b32 s{S_OPT}, s52'); a(f's_and_b32 s{S_OPT+1}, s53, 0xffff')
    a(f's_mov_b32 s{S_OPT+2}, {SZF}'); a(f's_mov_b32 s{S_OPT+3}, 0x20000')
    a(f'v_lshrrev_b32 v22, 2, v{L}')
    a('v_bfe_u32 v14, v22, 3, 1')
    a('s_lshl_b32 s54, s50, 4')
    a('v_add_u32 v22, s54, v22')
    a(f's_mov_b32 s53, {PITCH_F}')
    a('v_mul_lo_u32 v22, v22, s53')
    a(f'v_bfe_u32 v23, v{L}, 1, 1')
    a('v_xor_b32 v23, v14, v23')
    a('v_lshl_add_u32 v22, v23, 5, v22')
    a(f'v_and_b32 v23, 1, v{L}')
    a('v_lshl_add_u32 v22, v23, 4, v22')
    a(f'v_add_u32 v{V_ODMA}, s59, v22')
    a(f's_mov_b32 s{S_INCO}, {32*PITCH_F}')
    a(f's_mov_b32 s{S_SOO}, 0')
    a('s_lshl_b32 s54, s50, 10')
    a('s_lshl_b32 s52, s55, 11')
    a('s_add_u32 s54, s54, s52')
    for sl in range(4):
        a(f's_add_u32 s{S_M0O+sl}, s54, {WBASE + 4*WCOL + sl*4096}')
    a(f's_lshl_b32 s49, s{S_WNI}, 15')
    a('v_add_u32 v22, s49, v17')
    for u in range(4):
        a(f'v_xor_b32 v21, {u}, v18')
        a(f'v_lshl_add_u32 v{V_W+u}, v21, 5, v22')
    a('v_lshlrev_b32 v22, 9, v13')
    a('v_lshl_add_u32 v22, v15, 6, v22')
    a('v_lshl_add_u32 v22, v16, 3, v22')
    a('v_and_b32 v14, 1, v13')
    a(f'v_xor_b32 v21, s{S_WNI}, v14')
    a('v_lshl_add_u32 v22, v21, 5, v22')
    a(f'v_add_u32 v{V_W+4}, {WBASE + 4*WCOL}, v22')
    a(f's_lshl_b32 s49, s{S_WNI}, 7')
    a('s_add_u32 s49, s49, s58')
    a('s_lshl_b32 s49, s49, 5')
    a(f's_add_u32 s{S_KO0}, s49, 65536')
    a('s_lshl_b32 s49, s59, 5')
    a(f's_add_u32 s{S_KO1}, s49, 65536')
    a(f's_cmp_lt_u32 s{S_W}, 4')
    a('s_cbranch_scc0 L_k1_Y_0')
    gen_mainloop(a, Variant('Y', None, True), opt)
    a('s_branch L_k1_epiY')
    a.label('L_k1_Y_0')
    gen_mainloop(a, Variant('Y', None, False), opt)
    a.label('L_k1_epiY')
    if opt.get('ts'):
        a(f's_memtime s[{S_TS+4}:{S_TS+5}]'); a('s_memrealtime s[76:77]')
    gen_epilogue(a, 'Y', opt)
    a.label('L_k1_fin')
    if opt.get('ts'):
        a('s_waitcnt vmcnt(0)')
        a(f's_memtime s[{S_TS+6}:{S_TS+7}]')
        a('s_memrealtime s[78:79]')
        a('s_waitcnt lgkmcnt(0)')
        for q in (2, 4, 6):
            a(f's_sub_u32 s{S_TS+q}, s{S_TS+q}, s{S_TS}')
        a(f'v_mov_b32 v12, s{S_TS+2}'); a(f'v_mov_b32 v13, s{S_TS+4}'); a(f'v_mov_b32 v14, s{S_TS+6}'); a(f'v_mov_b32 v15, s{S_TS}')
        a('v_mov_b32 v16, s72'); a('v_mov_b32 v17, s74'); a('v_mov_b32 v18, s76'); a('v_mov_b32 v19, s78')
        a('s_lshl_b32 s46, s2, 3'); a(f's_add_u32 s46, s46, s{S_W}'); a('s_lshl_b32 s46, s46, 5')
        a(f's_add_u32 s46, s46, {WS_TS - WS_A2}')
        a('v_mov_b32 v20, 0')
        a(f'v_cmp_eq_u32 vcc, 0, v{V_LANE}')
        a('s_and_saveexec_b64 s[48:49], vcc')
        a(f'buffer_store_dwordx4 v[12:15], v20, s[{S_OUT}:{S_OUT+3}], s46 offen')
        a(f'buffer_store_dwordx4 v[16:19], v20, s[{S_OUT}:{S_OUT+3}], s46 offen offset:16')
    a.label('L_k1_end')
    a('s_endpgm')
    return kernel_header(name) + a.text(), kernel_desc(name, 256, 200)
```

```python
from asmlib import *
from sched import Sched
from k0 import WS_A2, A2_MB_STRIDE, WS_A2_SIZE, WS_TS
from k1 import mfma16, fbits

WS_SLAB = 64 << 20
NS = 6
XST = 16384
WBASE = NS * XST
WCOL = NS * 4096
LDS_K2 = WBASE + 2 * WCOL
NST = 36

V_LANE = 0
V_ADMA, V_WDMA = 1, 2
V_A, V_A2 = 3, 4
V_W = 5
V_T = 10
V_KEEP = 32
V_RES = 48
V_ACC = 64
def acc(j, i): return V_ACC + (4 * j + i) * 4
A_W = (0, 16); A_X = (32, 48)

S_A2, S_WO, S_WD, S_SLAB = 12, 16, 20, 24
S_W, S_WM, S_WN, S_MT, S_NT, S_KS = 28, 29, 30, 31, 32, 33
S_SOA, S_SOW, S_M0A, S_M0W, S_CNT = 34, 35, 36, 37, 38
S_X, S_OUT, S_DBG = 40, 44, 48
S_T = 84
S_TS = 60

def w_read(j, slot, st):
    r = A_W[st] + 4 * j
    off = slot * 4096
    return [f'ds_read_b64_tr_b16 {ar(r,2)}, v{V_W+j} offset:{off}',
            f'ds_read_b64_tr_b16 {ar(r+2,2)}, v{V_W+j} offset:{off+2048}']
def x_read(i, slot, st):
    base = V_A if slot < 3 else V_A2
    return f'ds_read_b128 {ar(A_X[st]+4*i,4)}, v{base} offset:{(slot%3)*XST + i*1024}'

def dma_list(t):
    slot = t % NS
    srd = S_WO if t < 8 else S_WD
    D = []
    pre = []
    if t == 8:
        pre = [f's_mov_b32 s{S_SOA}, s{S_T+8}', f's_mov_b32 s{S_SOW}, s{S_T+9}']
    D.append((pre + [f's_add_u32 m0, s{S_M0A}, {slot*XST}'],
              f'buffer_load_dwordx4 v{V_ADMA}, s[{S_A2}:{S_A2+3}], s{S_SOA} offen lds', None))
    D.append(([], f'buffer_load_dwordx4 v{V_ADMA}, s[{S_A2}:{S_A2+3}], s{S_SOA} offen offset:1024 lds',
              f's_add_u32 s{S_SOA}, s{S_SOA}, 2048'))
    D.append(([f's_add_u32 m0, s{S_M0W}, {slot*4096}'],
              f'buffer_load_dwordx4 v{V_WDMA}, s[{srd}:{srd+3}], s{S_SOW} offen lds',
              f's_add_u32 s{S_SOW}, s{S_SOW}, {32*2048}'))
    return D

def gen_mainloop(a, opt):
    PD = NS - 1
    nodma = opt.get('no_dma2'); nomf = opt.get('no_mfma2')
    if not nodma:
        for t in range(PD):
            for (pre, ld, post) in dma_list(t):
                for p in pre: a(p)
                if pre: a('s_nop 0')
                a(ld)
                if post: a(post)
    for r in range(V_ACC, V_ACC + 64): a(f'v_mov_b32 v{r}, 0')
    a(f's_waitcnt vmcnt({3*(PD-1)})')
    a('s_barrier')
    if opt.get('ts'):
        a(f's_memtime s[{S_TS+2}:{S_TS+3}]'); a('s_memrealtime s[74:75]'); a('s_waitcnt lgkmcnt(0)')
    S = Sched()
    def reads_for(st):
        slot = st % NS; b = st % 2
        R = []
        R.append((x_read(0, slot, b), ('x', st, 0)))
        for t in w_read(0, slot, b): R.append((t, ('w', st, 0)))
        for i in range(1, 4): R.append((x_read(i, slot, b), ('x', st, i)))
        for j in range(1, 4):
            for t in w_read(j, slot, b): R.append((t, ('w', st, j)))
        return R
    S.mark('pro')
    for (t, tag) in reads_for(0): S.read(t, tag)
    S.op(f's_waitcnt vmcnt({3*(PD-2)})')
    S.op('s_barrier')
    for st in range(NST):
        S.mark(f'st{st}')
        b = st % 2
        R = reads_for(st + 1) if st + 1 < NST else []
        dm = dma_list(st + PD) if (st + PD < NST and not nodma) else []
        gaps = [[] for _ in range(16)]
        for idx, x in enumerate(R): gaps[idx].append(('r', x))
        dpos = opt.get('dma_pos2', [1, 5, 9])
        for idx, (pre, ld, post) in enumerate(dm):
            g = dpos[idx]
            for p in pre: gaps[g - 1].append(('o', p))
            gaps[g].append(('o', ld))
            if post: gaps[g].append(('o', post))
        n = 0
        for j in range(4):
            for i in range(4):
                t = mfma16(acc(j, i), ar(A_W[b] + 4 * j, 4), ar(A_X[b] + 4 * i, 4))
                S.op('s_nop 0' if nomf else t, [('w', st, j), ('x', st, i)])
                for kind, x in gaps[n]:
                    if kind == 'r': S.read(x[0], x[1])
                    else: S.op(x)
                n += 1
        rem = NST - 1 - (st + 2)
        infl = min(PD - 2, max(rem, 0)) if st + 2 < NST else None
        if infl is not None: S.op(f's_waitcnt vmcnt({0 if nodma else 3*infl})')
        if st < NST - 1 and not opt.get('no_barrier2'): S.op('s_barrier')
    segs = S.finalize()
    for k in range(2, 5):
        for s in range(6):
            assert segs[f'st{6*k+s}'] == segs[f'st{6+s}'], (k, s)
    a.extend(segs['pro'])
    for s in range(6): a.extend(segs[f'st{s}'])
    a(f's_mov_b32 s{S_CNT}, 4')
    a('.p2align 3')
    a.label('L_k2_loop')
    for s in range(6, 12): a.extend(segs[f'st{s}'])
    a(f's_sub_u32 s{S_CNT}, s{S_CNT}, 1')
    a(f's_cmp_lg_u32 s{S_CNT}, 0')
    a('s_cbranch_scc1 L_k2_loop')
    for s in range(30, 36): a.extend(segs[f'st{s}'])

def srd(a, dst, lo, hi, size, add=0):
    if add:
        a(f's_add_u32 s{dst}, s{lo}, {add}'); a(f's_addc_u32 s{dst+1}, s{hi}, 0'); a(f's_and_b32 s{dst+1}, s{dst+1}, 0xffff')
    else:
        a(f's_mov_b32 s{dst}, s{lo}'); a(f's_and_b32 s{dst+1}, s{hi}, 0xffff')
    a(f's_mov_b32 s{dst+2}, {size}'); a(f's_mov_b32 s{dst+3}, 0x20000')

def gen_k2(opt, name='gemm2_kernel'):
    a = Asm()
    L = V_LANE
    a('s_cmp_ge_u32 s2, 256')
    a('s_cbranch_scc1 L_k2_end')
    if opt.get('ts'):
        a(f's_memtime s[{S_TS}:{S_TS+1}]'); a('s_memrealtime s[72:73]')
    a('s_load_dwordx2 s[4:5], s[0:1], 0')
    a('s_load_dwordx2 s[6:7], s[0:1], 16')
    a('s_load_dwordx4 s[8:11], s[0:1], 48')
    a('s_load_dwordx4 s[52:55], s[0:1], 64')
    a('v_lshrrev_b32 v10, 6, v0')
    a(f'v_and_b32 v{L}, 63, v0')
    a('s_nop 0')
    a(f'v_readfirstlane_b32 s{S_W}, v10')
    a('s_and_b32 s56, s2, 7')
    a('s_lshr_b32 s57, s2, 3')
    a(f's_lshr_b32 s{S_KS}, s56, 1')
    a('s_and_b32 s56, s56, 1')
    a('s_lshl_b32 s56, s56, 2')
    a('s_and_b32 s58, s57, 3')
    a(f's_add_u32 s{S_MT}, s56, s58')
    a(f's_lshr_b32 s{S_NT}, s57, 2')
    a(f's_and_b32 s{S_WM}, s{S_W}, 3')
    a(f's_lshr_b32 s{S_WN}, s{S_W}, 2')
    a('s_waitcnt lgkmcnt(0)')
    srd(a, S_A2, 54, 55, WS_A2_SIZE, WS_A2)
    srd(a, S_SLAB, 54, 55, (64 << 20) if opt.get('ts') else (16 << 20), WS_SLAB)
    srd(a, S_WO, 6, 7, 1024 * 2048)
    srd(a, S_WD, 8, 9, 3584 * 2048)
    srd(a, S_X, 4, 5, 2048 * 2048)
    srd(a, S_OUT, 10, 11, 2048 * 2048)
    srd(a, S_DBG, 52, 53, 256)
    a(f's_lshl_b32 s56, s{S_MT}, 3'); a(f's_add_u32 s56, s56, s{S_W}')
    a(f's_mul_i32 s56, s56, {A2_MB_STRIDE}')
    a(f'v_lshlrev_b32 v10, 4, v{L}')
    a(f'v_add_u32 v{V_ADMA}, s56, v10')
    a(f's_lshl_b32 s{S_SOA}, s{S_KS}, 14')
    a(f's_mul_i32 s{S_T+8}, s{S_KS}, {28*2048}'); a(f's_add_u32 s{S_T+8}, s{S_T+8}, {32*2048}')
    a(f's_lshl_b32 s{S_M0A}, s{S_W}, 11')
    a(f'v_lshrrev_b32 v11, 3, v{L}')
    a(f'v_bfe_u32 v12, v{L}, 1, 2')
    a('v_bfe_u32 v13, v11, 1, 2')
    a('v_xor_b32 v12, v12, v13')
    a(f's_lshl_b32 s56, s{S_WM}, 3')
    a('v_add_u32 v11, s56, v11')
    a('v_lshlrev_b32 v11, 11, v11')
    a('v_lshl_add_u32 v11, v12, 5, v11')
    a(f'v_and_b32 v12, 1, v{L}')
    a('v_lshl_add_u32 v11, v12, 4, v11')
    a(f's_lshl_b32 s56, s{S_NT}, 8'); a(f's_lshl_b32 s57, s{S_WN}, 7'); a('s_add_u32 s56, s56, s57')
    a(f'v_add_u32 v{V_WDMA}, s56, v11')
    a(f's_mul_i32 s{S_SOW}, s{S_KS}, {256*2048}')
    a(f's_mul_i32 s{S_T+9}, s{S_KS}, {896*2048}')
    a(f's_mul_i32 s56, s{S_WN}, {WCOL}'); a(f's_lshl_b32 s57, s{S_WM}, 10'); a('s_add_u32 s56, s56, s57')
    a(f's_add_u32 s{S_M0W}, s56, {WBASE}')
    a(f's_lshl_b32 s56, s{S_WM}, 12')
    a(f'v_add_u32 v{V_A}, s56, v10')
    a(f'v_add_u32 v{V_A2}, {3*XST}, v{V_A}')
    a(f'v_lshrrev_b32 v11, 5, v{L}')
    a('v_lshlrev_b32 v12, 10, v11')
    a(f'v_bfe_u32 v13, v{L}, 4, 1')
    a(f'v_bfe_u32 v14, v{L}, 2, 2')
    a('v_lshl_add_u32 v15, v13, 2, v14')
    a('v_lshl_add_u32 v12, v15, 7, v12')
    a(f'v_and_b32 v16, 3, v{L}')
    a('v_lshl_add_u32 v12, v16, 3, v12')
    a(f's_mul_i32 s56, s{S_WN}, {WCOL}'); a(f's_add_u32 s56, s56, {WBASE}')
    a('v_add_u32 v12, s56, v12')
    a('v_lshrrev_b32 v15, 1, v15')
    for u in range(4):
        a(f'v_xor_b32 v16, {u}, v15')
        a(f'v_lshl_add_u32 v{V_W+u}, v16, 5, v12')
    gen_mainloop(a, opt)
    if opt.get('ts'):
        a(f's_memtime s[{S_TS+4}:{S_TS+5}]'); a('s_memrealtime s[76:77]')
    a(f'v_and_b32 v10, 15, v{L}')
    a(f's_lshl_b32 s56, s{S_MT}, 8'); a(f's_lshl_b32 s57, s{S_WM}, 6'); a('s_add_u32 s56, s56, s57')
    a(f's_lshl_b32 s57, s{S_KS}, 4'); a('s_add_u32 s56, s56, s57')
    a('v_add_u32 v10, s56, v10')
    a('v_lshlrev_b32 v10, 11, v10')
    a(f'v_bfe_u32 v11, v{L}, 4, 1')
    a('v_lshl_add_u32 v10, v11, 5, v10')
    a(f'v_lshrrev_b32 v11, 5, v{L}')
    a('v_lshl_add_u32 v10, v11, 4, v10')
    a(f's_lshl_b32 s56, s{S_NT}, 8'); a(f's_lshl_b32 s57, s{S_WN}, 7'); a('s_add_u32 s56, s56, s57')
    a('v_add_u32 v9, s56, v10')
    a(f'buffer_load_dwordx4 v[{V_RES}:{V_RES+3}], v9, s[{S_X}:{S_X+3}], 0 offen')
    a(f'buffer_load_dwordx4 v[{V_RES+4}:{V_RES+7}], v9, s[{S_X}:{S_X+3}], 0 offen offset:64')
    a('s_nop 7')
    a(f's_lshl_b32 s56, s{S_MT}, 3'); a(f's_add_u32 s56, s56, s{S_NT}')
    a(f's_lshl_b32 s{S_T+5}, s56, 2')
    a('s_lshl_b32 s56, s56, 18')
    a(f's_lshl_b32 s57, s{S_W}, 11'); a('s_add_u32 s56, s56, s57')
    a(f's_lshl_b32 s57, s{S_KS}, 14'); a(f's_add_u32 s{S_T+6}, s56, s57')
    a(f's_lshl_b32 s57, s{S_KS}, 16'); a(f's_add_u32 s{S_T+7}, s56, s57')
    a(f'v_lshlrev_b32 v11, 4, v{L}')
    for i in range(4):
        lab = f'L_k2_keep{i}'; nxt = f'L_k2_n{i}'
        a(f's_cmp_eq_u32 s{S_KS}, {i}')
        a(f's_cbranch_scc1 {lab}')
        for j in range(4):
            A = acc(j, i)
            a(f'v_cvt_pk_bf16_f32 v{12+2*j}, v{A}, v{A+1}')
            a(f'v_cvt_pk_bf16_f32 v{13+2*j}, v{A+2}, v{A+3}')
        a(f's_add_u32 s56, s{S_T+6}, {i << 16}')
        a(f'buffer_store_dwordx4 v[12:15], v11, s[{S_SLAB}:{S_SLAB+3}], s56 offen sc1')
        a(f'buffer_store_dwordx4 v[16:19], v11, s[{S_SLAB}:{S_SLAB+3}], s56 offen offset:1024 sc1')
        a('s_nop 1')
        a(f's_branch {nxt}')
        a.label(lab)
        for j in range(4):
            for r in range(4): a(f'v_mov_b32 v{V_KEEP+4*j+r}, v{acc(j,i)+r}')
        a.label(nxt)
    a('s_waitcnt vmcnt(0)')
    a('s_barrier')
    if opt.get('ts'):
        a('s_memtime s[94:95]')
    a(f's_cmp_lg_u32 s{S_W}, 0')
    a('s_cbranch_scc1 L_k2_wait_done')
    a(f'v_mov_b32 v12, s{S_T+5}')
    a('v_mov_b32 v13, 1')
    a(f'v_cmp_eq_u32 vcc, 0, v{L}')
    a('s_and_saveexec_b64 s[56:57], vcc')
    a(f'buffer_atomic_add v13, v12, s[{S_DBG}:{S_DBG+3}], 0 offen sc1')
    a('s_mov_b64 exec, s[56:57]')
    a('s_mov_b32 s58, 0')
    a.label('L_k2_poll')
    a(f'buffer_load_dword v14, v12, s[{S_DBG}:{S_DBG+3}], 0 offen sc1')
    a('s_waitcnt vmcnt(0)')
    a('v_readfirstlane_b32 s59, v14')
    a('s_add_u32 s58, s58, 1')
    a('s_cmp_ge_u32 s59, 4')
    a('s_cbranch_scc1 L_k2_wait_done')
    a('s_cmp_lt_u32 s58, 0x40000')
    a('s_cbranch_scc0 L_k2_wait_done')
    a('s_sleep 1')
    a('s_branch L_k2_poll')
    a.label('L_k2_wait_done')
    a('s_barrier')
    if opt.get('ts'):
        a('s_memtime s[80:81]'); a('s_memrealtime s[82:83]')
    for n, x in enumerate((1, 2, 3)):
        a(f's_xor_b32 s56, s{S_KS}, {x}'); a('s_lshl_b32 s56, s56, 14'); a(f's_add_u32 s56, s56, s{S_T+7}')
        d = V_ACC + 8 * n
        a(f'buffer_load_dwordx4 v[{d}:{d+3}], v11, s[{S_SLAB}:{S_SLAB+3}], s56 offen sc1')
        a(f'buffer_load_dwordx4 v[{d+4}:{d+7}], v11, s[{S_SLAB}:{S_SLAB+3}], s56 offen offset:1024 sc1')
    for n in range(3):
        a(f's_waitcnt vmcnt({4-2*n})')
        d = V_ACC + 8 * n
        for q in range(8):
            k = V_KEEP + 4 * (q >> 1) + 2 * (q & 1)
            a(f'v_lshlrev_b32 v12, 16, v{d+q}')
            a(f'v_and_b32 v13, 0xffff0000, v{d+q}')
            a(f'v_add_f32 v{k}, v{k}, v12')
            a(f'v_add_f32 v{k+1}, v{k+1}, v13')
    a('s_nop 1')
    for p in range(2):
        T = V_KEEP + 8 * p; U = T + 4
        for r in range(4): a(f'v_permlane16_swap_b32 v{T+r}, v{U+r}')
    a('s_nop 1')
    for p in range(2):
        T = V_KEEP + 8 * p; R = V_RES + 4 * p
        for q in range(4):
            a(f'v_lshlrev_b32 v12, 16, v{R+q}')
            a(f'v_and_b32 v13, 0xffff0000, v{R+q}')
            a(f'v_add_f32 v{T+2*q}, v{T+2*q}, v12')
            a(f'v_add_f32 v{T+2*q+1}, v{T+2*q+1}, v13')
        for q in range(4):
            a(f'v_cvt_pk_bf16_f32 v{16+4*p+q}, v{T+2*q}, v{T+2*q+1}')
    a(f'buffer_store_dwordx4 v[16:19], v9, s[{S_OUT}:{S_OUT+3}], 0 offen')
    a(f'buffer_store_dwordx4 v[20:23], v9, s[{S_OUT}:{S_OUT+3}], 0 offen offset:64')
    if opt.get('ts'):
        a('s_waitcnt vmcnt(0)')
        a(f's_memtime s[{S_TS+6}:{S_TS+7}]'); a('s_memrealtime s[78:79]')
        a('s_waitcnt lgkmcnt(0)')
        for q in (2, 4, 6): a(f's_sub_u32 s{S_TS+q}, s{S_TS+q}, s{S_TS}')
        a(f's_sub_u32 s80, s80, s{S_TS}')
        a(f's_sub_u32 s{S_TS+2}, s94, s{S_TS}')
        a(f'v_mov_b32 v12, s{S_TS+2}'); a(f'v_mov_b32 v13, s{S_TS+4}'); a(f'v_mov_b32 v14, s{S_TS+6}'); a('v_mov_b32 v15, s80')
        a('v_mov_b32 v16, s72'); a('v_mov_b32 v17, s74'); a('v_mov_b32 v18, s76'); a('v_mov_b32 v19, s78')
        a('s_lshl_b32 s56, s2, 3'); a(f's_add_u32 s56, s56, s{S_W}'); a('s_lshl_b32 s56, s56, 5')
        a(f's_add_u32 s56, s56, {32 << 20}')
        a('v_mov_b32 v20, 0')
        a(f'v_cmp_eq_u32 vcc, 0, v{L}')
        a('s_and_saveexec_b64 s[58:59], vcc')
        a(f'buffer_store_dwordx4 v[12:15], v20, s[{S_SLAB}:{S_SLAB+3}], s56 offen')
        a(f'buffer_store_dwordx4 v[16:19], v20, s[{S_SLAB}:{S_SLAB+3}], s56 offen offset:16')
    a.label('L_k2_end')
    a('s_endpgm')
    return kernel_header(name) + a.text(), kernel_desc(name, 192, 128)
```

```python
class Op:
    __slots__ = ('text', 'lds', 'tag', 'needs', 'mark')
    def __init__(self, text, lds=False, tag=None, needs=(), mark=None):
        self.text = text; self.lds = lds; self.tag = tag; self.needs = tuple(needs); self.mark = mark

class Sched:
    def __init__(self):
        self.ops = []
    def op(self, text, needs=()):
        self.ops.append(Op(text, needs=needs))
    def read(self, text, tag):
        self.ops.append(Op(text, lds=True, tag=tag))
    def ldsop(self, text):
        self.ops.append(Op(text, lds=True))
    def mark(self, name):
        self.ops.append(Op(None, mark=name))
    def drain(self):
        self.ops.append(Op('s_waitcnt lgkmcnt(0)', mark='__drain'))
    def finalize(self):
        issued = 0
        pos = {}
        done = 0
        segs = {}
        cur = segs.setdefault('_start', [])
        for o in self.ops:
            if o.mark == '__drain':
                cur.append(o.text); done = issued; continue
            if o.mark is not None:
                cur = segs.setdefault(o.mark, []); continue
            need = 0
            for t in o.needs:
                assert t in pos, f'tag {t} never issued'
                need = max(need, pos[t])
            if need > done:
                n = issued - need
                assert n <= 15, f'lgkmcnt {n} too large'
                cur.append(f's_waitcnt lgkmcnt({n})')
                done = need
            cur.append(o.text)
            if o.lds:
                issued += 1
                if o.tag is not None: pos[o.tag] = issued
        return segs
```

```python
import sys
from asmlib import *
import k0, k1, k2

HEAD = """; parallel_sum(sliding-local-dilated attention, GeGLU FFN) with pre-LayerNorm, MI355X gfx950
"""

def build_text(launches, bodies, descs):
    t = HEAD
    for (k, g, b, lds) in launches:
        t += f'; @launch kernel={k} grid=({g},1,1) block=({b},1,1) lds={lds}\n'
    t += '.amdgcn_target "amdgcn-amd-amdhsa--gfx950"\n'
    for b in bodies: t += b
    for d in descs: t += d
    return t

def gen_k01(opt):
    b0, d0 = k0.gen_k0()
    b1, d1 = k1.gen_k1(opt)
    return build_text([('ln_kernel', 256, 512, 1024), ('gemm1_kernel', 256, 512, k1.LDS_K1)], [b0, b1], [d0, d1])

def gen_all(opt):
    b0, d0 = k0.gen_k0()
    b1, d1 = k1.gen_k1(opt)
    b2, d2 = k2.gen_k2(opt)
    return build_text([('ln_kernel', 256, 512, 1024), ('gemm1_kernel', 256, 512, k1.LDS_K1), ('gemm2_kernel', 256, 512, k2.LDS_K2)],
                      [b0, b1, b2], [d0, d1, d2])

if __name__ == '__main__':
    import json
    opt = json.loads(sys.argv[2]) if len(sys.argv) > 2 else {}
    t = gen_all(opt)
    open(sys.argv[1] if len(sys.argv) > 1 else 'all.s', 'w').write(t)
    print(len(t))
```

```python
from asmlib import *
from k0 import WS_XN, WS_A2, A2_MB_STRIDE, WS_A2_SIZE, WS_TS, bf16_round, wave_reduce_x8
import k1

LNS = k1.LDS_K1
LDS_F = LNS + 512
S_DBG = 96
VB = 40
def v(n): return VB + n

def gen_ln_load(a, opt):
    L = k1.V_LANE
    a(f'v_and_b32 v{v(3)}, 7, v{L}')
    a(f'v_lshrrev_b32 v{v(4)}, 3, v{L}')
    a(f's_lshl_b32 s46, s{k1.S_W}, 3')
    a(f'v_add_u32 v{v(5)}, s46, v{v(4)}')
    a('s_lshl_b32 s46, s2, 3')
    a(f'v_add_u32 v{v(6)}, s46, v{v(3)}')
    a(f'v_lshlrev_b32 v{v(7)}, 11, v{v(6)}')
    a(f'v_lshl_add_u32 v{v(7)}, v{v(5)}, 4, v{v(7)}')
    a('s_mov_b32 s80, s94'); a('s_and_b32 s81, s95, 0xffff'); a('s_mov_b32 s82, 0x400000'); a('s_mov_b32 s83, 0x20000')
    nt = ' nt' if opt.get('nt_x') else ''
    a(f'buffer_load_dwordx4 v[{v(8)}:{v(11)}], v{v(7)}, s[80:83], 0 offen' + nt)
    a(f'buffer_load_dwordx4 v[{v(12)}:{v(15)}], v{v(7)}, s[80:83], 0 offen offset:1024' + nt)
    a(f'v_lshrrev_b32 v{v(16)}, 5, v{v(6)}')
    a(f'v_lshlrev_b32 v{v(16)}, 16, v{v(16)}')
    a(f'v_bfe_u32 v{v(17)}, v{v(6)}, 4, 1')
    a(f'v_lshl_add_u32 v{v(16)}, v{v(17)}, 10, v{v(16)}')
    a(f'v_and_b32 v{v(17)}, 15, v{v(6)}')
    a(f'v_lshl_add_u32 v{v(16)}, v{v(17)}, 4, v{v(16)}')
    a(f'v_lshrrev_b32 v{v(17)}, 2, v{v(5)}')
    a(f'v_lshl_add_u32 v{v(16)}, v{v(17)}, 11, v{v(16)}')
    a(f'v_and_b32 v{v(17)}, 3, v{v(5)}')
    a(f'v_lshl_add_u32 v{v(16)}, v{v(17)}, 8, v{v(16)}')
    a(f'v_lshlrev_b32 v{v(18)}, 5, v{v(3)}')
    a(f'v_add_u32 v{v(18)}, {LNS}, v{v(18)}')
    a(f's_lshl_b32 s46, s{k1.S_W}, 2')
    a(f'v_add_u32 v{v(19)}, s46, v{v(18)}')

def gen_ln_compute(a, opt, nwait):
    L = k1.V_LANE
    a(f's_waitcnt vmcnt({nwait})')
    if opt.get('ts') == 2: a('s_memrealtime s[66:67]')
    for i in range(8):
        a(f'v_lshlrev_b32 v{v(20+2*i)}, 16, v{v(8+i)}')
        a(f'v_and_b32 v{v(21+2*i)}, 0xffff0000, v{v(8+i)}')
    a(f'v_add_f32 v{v(40)}, v{v(20)}, v{v(21)}')
    for i in range(2, 16): a(f'v_add_f32 v{v(40)}, v{v(40)}, v{v(20+i)}')
    wave_reduce_x8(a, v(40), v(41), v(42))
    a(f'v_cmp_gt_u32 vcc, 8, v{L}')
    a('s_and_saveexec_b64 s[84:85], vcc')
    a(f'ds_write_b32 v{v(19)}, v{v(40)}')
    a('s_mov_b64 exec, s[84:85]')
    a('s_waitcnt lgkmcnt(0)')
    a('s_barrier')
    a(f'ds_read_b128 v[{v(44)}:{v(47)}], v{v(18)}')
    a(f'ds_read_b128 v[{v(48)}:{v(51)}], v{v(18)} offset:16')
    a('s_waitcnt lgkmcnt(0)')
    a(f'v_add_f32 v{v(40)}, v{v(44)}, v{v(45)}')
    for i in range(46, 52): a(f'v_add_f32 v{v(40)}, v{v(40)}, v{v(i)}')
    a(f'v_mul_f32 v{v(40)}, 0x3a800000, v{v(40)}')
    a(f'v_sub_f32 v{v(41)}, v{v(20)}, v{v(40)}')
    a(f'v_mul_f32 v{v(43)}, v{v(41)}, v{v(41)}')
    for i in range(1, 16):
        a(f'v_sub_f32 v{v(41)}, v{v(20+i)}, v{v(40)}')
        a(f'v_fmac_f32 v{v(43)}, v{v(41)}, v{v(41)}')
    wave_reduce_x8(a, v(43), v(41), v(42))
    a(f'v_cmp_gt_u32 vcc, 8, v{L}')
    a('s_and_saveexec_b64 s[84:85], vcc')
    a(f'ds_write_b32 v{v(19)}, v{v(43)} offset:256')
    a('s_mov_b64 exec, s[84:85]')
    a('s_waitcnt lgkmcnt(0)')
    a('s_barrier')
    a(f'ds_read_b128 v[{v(44)}:{v(47)}], v{v(18)} offset:256')
    a(f'ds_read_b128 v[{v(48)}:{v(51)}], v{v(18)} offset:272')
    a('s_waitcnt lgkmcnt(0)')
    a(f'v_add_f32 v{v(43)}, v{v(44)}, v{v(45)}')
    for i in range(46, 52): a(f'v_add_f32 v{v(43)}, v{v(43)}, v{v(i)}')
    a(f'v_mul_f32 v{v(43)}, 0x3a800000, v{v(43)}')
    bf16_round(a, v(40), v(40))
    bf16_round(a, v(43), v(43))
    a(f'v_add_f32 v{v(43)}, 0x3727c5ac, v{v(43)}')
    bf16_round(a, v(43), v(43))
    a(f'v_sqrt_f32 v{v(43)}, v{v(43)}')
    a('s_nop 0')
    bf16_round(a, v(43), v(43))
    a(f'v_rcp_f32 v{v(43)}, v{v(43)}')
    a('s_nop 0')
    for i in range(16): a(f'v_sub_f32 v{v(20+i)}, v{v(20+i)}, v{v(40)}')
    for i in range(8): a(f'v_cvt_pk_bf16_f32 v{v(8+i)}, v{v(20+2*i)}, v{v(21+2*i)}')
    for i in range(8):
        a(f'v_lshlrev_b32 v{v(20+2*i)}, 16, v{v(8+i)}')
        a(f'v_and_b32 v{v(21+2*i)}, 0xffff0000, v{v(8+i)}')
    for i in range(16): a(f'v_mul_f32 v{v(20+i)}, v{v(20+i)}, v{v(43)}')
    for i in range(8): a(f'v_cvt_pk_bf16_f32 v{v(8+i)}, v{v(20+2*i)}, v{v(21+2*i)}')
    a(f'v_add_u32 v{v(17)}, 0x8000, v{v(16)}')
    a(f'buffer_store_dwordx4 v[{v(8)}:{v(11)}], v{v(16)}, s[{k1.S_XN}:{k1.S_XN+3}], 0 offen sc1')
    a(f'buffer_store_dwordx4 v[{v(12)}:{v(15)}], v{v(17)}, s[{k1.S_XN}:{k1.S_XN+3}], 0 offen sc1')

def gen_arrive(a, base):
    lab = a.uid('L_arr')
    a(f's_cmp_lg_u32 s{k1.S_W}, 0')
    a(f's_cbranch_scc1 {lab}')
    a(f's_lshl_b32 s46, s{k1.S_MT}, 5'); a(f's_add_u32 s46, s46, {base}')
    a('v_mov_b32 v34, s46'); a('v_mov_b32 v35, 1')
    a(f'v_cmp_eq_u32 vcc, 0, v{k1.V_LANE}')
    a('s_and_saveexec_b64 s[46:47], vcc')
    a(f'buffer_atomic_add v35, v34, s[{S_DBG}:{S_DBG+3}], 0 offen sc1')
    a('s_mov_b64 exec, s[46:47]')
    a.label(lab)

def gen_wait(a, base, prev_too, opt):
    lab = a.uid('L_wd'); poll = a.uid('L_wp')
    a(f's_cmp_lg_u32 s{k1.S_W}, 0')
    a(f's_cbranch_scc1 {lab}')
    a(f's_lshl_b32 s46, s{k1.S_MT}, 5'); a(f's_add_u32 s46, s46, {base}')
    if prev_too:
        a(f's_sub_u32 s47, s{k1.S_MT}, 1'); a('s_max_i32 s47, s47, 0')
        a('s_lshl_b32 s47, s47, 5'); a(f's_add_u32 s47, s47, {base}')
    else:
        a('s_mov_b32 s47, s46')
    a('v_mov_b32 v34, s47'); a('v_mov_b32 v35, s46')
    a(f'v_cmp_eq_u32 vcc, 0, v{k1.V_LANE}')
    a('s_nop 1')
    a('v_cndmask_b32 v34, v34, v35, vcc')
    a('s_mov_b32 s48, 0')
    a.label(poll)
    a(f'buffer_load_dword v35, v34, s[{S_DBG}:{S_DBG+3}], 0 offen sc1')
    a('s_waitcnt vmcnt(0)')
    a('v_cmp_gt_u32 vcc, 32, v35')
    a('s_add_u32 s48, s48, 1')
    a(f's_cbranch_vccz {lab}')
    a('s_cmp_lt_u32 s48, 0x20000')
    a(f's_cbranch_scc0 {lab}')
    a(f's_sleep {opt.get("sync_sleep", 4)}')
    a(f's_branch {poll}')
    a.label(lab)
    a('s_barrier')

def gen_fused_prologue(a, typ, opt):
    W = k1.S_W
    var = k1.Variant(typ, None, True)
    S_K = 49
    if typ == 'X':
        a(f's_mov_b32 s{S_K}, 0')
        for w in (0, 1, 2, 5):
            a(f's_cmp_eq_u32 s{W}, {w}'); a(f's_cselect_b32 s{S_K}, 1, s{S_K}')
        a(f's_cmp_eq_u32 s{W}, 4'); a(f's_cselect_b32 s{S_K}, 2, s{S_K}')
    else:
        a(f's_cmp_lt_u32 s{W}, 4'); a(f's_cselect_b32 s{S_K}, 1, 0')
    a(f's_mov_b32 s59, s{S_K}')
    def issue(entries, slot):
        for (pre, ld, post) in entries:
            if pre: a(pre); a('s_nop 0')
            a(ld)
            if post: a(post)
    for slot in range(3):
        D = k1.dma_list(var, slot)
        issue(D[2:4], slot)
        lab = a.uid('L_now')
        a('s_cmp_lg_u32 s59, 1'); a(f's_cbranch_scc1 {lab}')
        issue(D[4:5], slot)
        a.label(lab)
    gen_ln_compute(a, opt, 6)
    if opt.get('ts') == 2: a('s_memrealtime s[68:69]')
    a('s_waitcnt vmcnt(0)')
    a('s_barrier')
    if opt.get('ts') == 2: a('s_memrealtime s[100:101]')
    gen_arrive(a, 0)
    if opt.get('sentinel'):
        gen_sentinel(a)
    for r in range(k1.V_HACC, k1.V_ACC + 160): a(f'v_mov_b32 v{r}, 0')
    gen_wait(a, 0, typ == 'X', opt)
    if opt.get('ts'): a('s_memrealtime s[74:75]')
    for slot in range(3):
        D = k1.dma_list(var, slot)
        issue(D[0:2], slot)
        lab = a.uid('L_noh')
        a('s_cmp_lg_u32 s59, 2'); a(f's_cbranch_scc1 {lab}')
        issue(D[4:5], slot)
        a.label(lab)

def gen_sentinel(a):
    a(f's_add_u32 s84, s6, {k1.WS_SLAB}'); a('s_addc_u32 s85, s7, 0'); a('s_and_b32 s85, s85, 0xffff')
    a(f's_mov_b32 s86, {12 << 20}'); a('s_mov_b32 s87, 0x20000')
    a(f's_mul_i32 s88, s2, {48*1024}'); a(f's_mul_i32 s89, s{k1.S_W}, 6144'); a('s_add_u32 s88, s88, s89')
    a(f'v_lshlrev_b32 v30, 4, v{k1.V_LANE}')
    for q in range(4): a(f'v_mov_b32 v{24+q}, -1')
    for q in range(6):
        a(f's_add_u32 s89, s88, {q*1024}')
        a('buffer_store_dwordx4 v[24:27], v30, s[84:87], s89 offen sc1')
```

```python
from asmlib import *

import os
WS_BASE = int(os.environ.get('WSBASE', '0')) << 20
WS_XN = WS_BASE + 0
WS_A2 = WS_BASE + (4 << 20)
A2_MB_STRIDE = 288 * 1024
WS_A2_SIZE = 64 * A2_MB_STRIDE
WS_DBG = WS_BASE + (32 << 20)
WS_TS = WS_BASE + (48 << 20)

def bf16_round(a, dst, src):
    a(f'v_cvt_pk_bf16_f32 v{dst}, v{src}, v{src}')
    a(f'v_lshlrev_b32 v{dst}, 16, v{dst}')

def wave_reduce_x8(a, v, t0, t1):
    a('s_nop 1')
    a(f'v_add_f32_dpp v{v}, v{v}, v{v} row_ror:8 row_mask:0xf bank_mask:0xf')
    a(f'v_mov_b32 v{t0}, v{v}')
    a(f'v_mov_b32 v{t1}, v{v}')
    a('s_nop 1')
    a(f'v_permlane16_swap_b32 v{t0}, v{t1}')
    a('s_nop 1')
    a(f'v_add_f32 v{v}, v{t0}, v{t1}')
    a(f'v_mov_b32 v{t0}, v{v}')
    a(f'v_mov_b32 v{t1}, v{v}')
    a('s_nop 1')
    a(f'v_permlane32_swap_b32 v{t0}, v{t1}')
    a('s_nop 1')
    a(f'v_add_f32 v{v}, v{t0}, v{t1}')

def gen_k0(opt=None, name='ln_kernel'):
    opt = opt or {}
    a = Asm()
    a('s_cmp_ge_u32 s2, 256')
    a('s_cbranch_scc1 L_k0_end')
    if opt.get('ts'): a('s_memrealtime s[40:41]')
    a('s_load_dwordx2 s[4:5], s[0:1], 0')
    a('s_load_dwordx2 s[6:7], s[0:1], 72')
    a('v_and_b32 v1, 63, v0')
    a('v_lshrrev_b32 v2, 6, v0')
    a('v_and_b32 v3, 7, v1')
    a('v_lshrrev_b32 v4, 3, v1')
    a('v_lshl_add_u32 v5, v2, 3, v4')
    a('s_lshl_b32 s3, s2, 3')
    a('v_add_u32 v6, s3, v3')
    a('v_lshlrev_b32 v7, 11, v6')
    a('v_lshl_add_u32 v7, v5, 4, v7')
    a('s_waitcnt lgkmcnt(0)')
    a('s_mov_b32 s8, s4'); a('s_and_b32 s9, s5, 0xffff'); a('s_mov_b32 s10, 0x400000'); a('s_mov_b32 s11, 0x20000')
    a('s_add_u32 s12, s6, %d' % WS_XN); a('s_addc_u32 s13, s7, 0'); a('s_and_b32 s13, s13, 0xffff')
    a('s_mov_b32 s14, 0x400000'); a('s_mov_b32 s15, 0x20000')
    nt = ' nt' if opt.get('nt_x') else ''
    a('buffer_load_dwordx4 v[8:11], v7, s[8:11], 0 offen' + nt)
    a('buffer_load_dwordx4 v[12:15], v7, s[8:11], 0 offen offset:1024' + nt)
    npf = opt.get('pf_w1', 0)
    if npf:
        a('s_load_dwordx2 s[20:21], s[0:1], 8')
        a('s_load_dwordx4 s[24:27], s[0:1], 32')
        a('s_lshl_b32 s18, s2, 9')
        a('v_add_u32 v60, s18, v0')
        a('v_lshlrev_b32 v60, 7, v60')
        a('s_waitcnt lgkmcnt(0)')
        for (p, pitch) in ((20, 6144), (24, 7168), (26, 7168)):
            tot = npf * pitch
            a(f's_mov_b32 s28, s{p}'); a(f's_and_b32 s29, s{p+1}, 0xffff'); a(f's_mov_b32 s30, {tot}'); a('s_mov_b32 s31, 0x20000')
            for r in range((tot + (131072*128) - 1) // (131072*128)):
                a(f's_mov_b32 s19, {r*131072*128}')
                a(f'buffer_load_dword v61, v60, s[28:31], s19 offen')
    a('v_lshrrev_b32 v16, 5, v6')
    a('v_lshlrev_b32 v16, 16, v16')
    a('v_bfe_u32 v17, v6, 4, 1')
    a('v_lshl_add_u32 v16, v17, 10, v16')
    a('v_and_b32 v17, 15, v6')
    a('v_lshl_add_u32 v16, v17, 4, v16')
    a('v_lshrrev_b32 v17, 2, v5')
    a('v_lshl_add_u32 v16, v17, 11, v16')
    a('v_and_b32 v17, 3, v5')
    a('v_lshl_add_u32 v16, v17, 8, v16')
    a('v_lshlrev_b32 v18, 5, v3')
    a('v_lshl_add_u32 v19, v2, 2, v18')
    a('s_waitcnt vmcnt(%d)' % (3 if npf else 0))
    for i in range(8):
        a(f'v_lshlrev_b32 v{20+2*i}, 16, v{8+i}')
        a(f'v_and_b32 v{21+2*i}, 0xffff0000, v{8+i}')
    a('v_add_f32 v40, v20, v21')
    for i in range(2, 16):
        a(f'v_add_f32 v40, v40, v{20+i}')
    wave_reduce_x8(a, 40, 41, 42)
    a('v_cmp_gt_u32 vcc, 8, v1')
    a('s_and_saveexec_b64 s[16:17], vcc')
    a('ds_write_b32 v19, v40')
    a('s_mov_b64 exec, s[16:17]')
    a('s_waitcnt lgkmcnt(0)')
    a('s_barrier')
    a('ds_read_b128 v[44:47], v18')
    a('ds_read_b128 v[48:51], v18 offset:16')
    a('s_waitcnt lgkmcnt(0)')
    a('v_add_f32 v40, v44, v45')
    for i in range(46, 52):
        a(f'v_add_f32 v40, v40, v{i}')
    a('v_mul_f32 v40, 0x3a800000, v40')
    a('v_sub_f32 v41, v20, v40')
    a('v_mul_f32 v43, v41, v41')
    for i in range(1, 16):
        a(f'v_sub_f32 v41, v{20+i}, v40')
        a('v_fmac_f32 v43, v41, v41')
    wave_reduce_x8(a, 43, 41, 42)
    a('v_cmp_gt_u32 vcc, 8, v1')
    a('s_and_saveexec_b64 s[16:17], vcc')
    a('ds_write_b32 v19, v43 offset:256')
    a('s_mov_b64 exec, s[16:17]')
    a('s_waitcnt lgkmcnt(0)')
    a('s_barrier')
    a('ds_read_b128 v[44:47], v18 offset:256')
    a('ds_read_b128 v[48:51], v18 offset:272')
    a('s_waitcnt lgkmcnt(0)')
    a('v_add_f32 v43, v44, v45')
    for i in range(46, 52):
        a(f'v_add_f32 v43, v43, v{i}')
    a('v_mul_f32 v43, 0x3a800000, v43')
    bf16_round(a, 40, 40)
    bf16_round(a, 43, 43)
    a('v_add_f32 v43, 0x3727c5ac, v43')
    bf16_round(a, 43, 43)
    a('v_sqrt_f32 v43, v43')
    a('s_nop 0')
    bf16_round(a, 43, 43)
    a('v_rcp_f32 v43, v43')
    a('s_nop 0')
    for i in range(16):
        a(f'v_sub_f32 v{20+i}, v{20+i}, v40')
    for i in range(8):
        a(f'v_cvt_pk_bf16_f32 v{8+i}, v{20+2*i}, v{21+2*i}')
    for i in range(8):
        a(f'v_lshlrev_b32 v{20+2*i}, 16, v{8+i}')
        a(f'v_and_b32 v{21+2*i}, 0xffff0000, v{8+i}')
    for i in range(16):
        a(f'v_mul_f32 v{20+i}, v{20+i}, v43')
    for i in range(8):
        a(f'v_cvt_pk_bf16_f32 v{8+i}, v{20+2*i}, v{21+2*i}')
    a('v_add_u32 v17, 0x8000, v16')
    fl = (' ' + opt['st_fl0']) if opt.get('st_fl0') else ''
    a('buffer_store_dwordx4 v[8:11], v16, s[12:15], 0 offen' + fl)
    a('buffer_store_dwordx4 v[12:15], v17, s[12:15], 0 offen' + fl)
    if opt.get('ts'):
        a('s_waitcnt vmcnt(0)')
        a('s_memrealtime s[42:43]')
        a('s_waitcnt lgkmcnt(0)')
        a('v_mov_b32 v40, s40'); a('v_mov_b32 v41, s42')
        a(f's_add_u32 s44, s6, {WS_TS + (1 << 20)}'); a('s_addc_u32 s45, s7, 0'); a('s_and_b32 s45, s45, 0xffff')
        a('s_mov_b32 s46, 0x10000'); a('s_mov_b32 s47, 0x20000')
        a('s_lshl_b32 s3, s2, 3'); a('v_mov_b32 v42, s3')
        a('v_cmp_eq_u32 vcc, 0, v0'); a('s_and_saveexec_b64 s[48:49], vcc')
        a('s_cbranch_execz L_k0_end')
        a('buffer_store_dwordx2 v[40:41], v42, s[44:47], 0 offen')
    a.label('L_k0_end')
    a('s_endpgm')
    return kernel_header(name) + a.text(), kernel_desc(name, 64, 64)

WS_SLAB = WS_BASE + (24 << 20)
```

```python
from asmlib import *
from sched import Sched
from k0 import WS_XN, WS_A2, A2_MB_STRIDE, WS_A2_SIZE, WS_DBG, WS_TS
import math, struct

ASTAGE = 17408
WBASE = 4 * ASTAGE
WCOL = 16384
LDS_K1 = WBASE + 5 * WCOL

V_LANE = 0
V_ADMA, V_WDMA, V_ODMA = 1, 2, 3
V_A, V_AH = 4, 5
V_W = 6
V_ST = 11
V_T = 12
V_HACC = 36
V_ACC = 40
def acc(j, i): return V_ACC + (4 * j + i) * 4
A_WR = 0
A_X = (16, 32)
A_XH = (48, 52)
def wring(G): return A_WR + 4 * (G % 4)

S_XN, S_WM, S_OPT, S_OUT = 12, 16, 20, 24
S_W, S_WMI, S_WNI, S_MT, S_NT = 28, 29, 30, 31, 32
S_SOA, S_SOW, S_SOW2, S_SOO, S_INCW, S_INCO = 33, 34, 35, 36, 37, 38
S_M0A, S_M0W = 39, 40
S_M0O = 41
S_CNT = 45
S_T = 46
S_TS = 60
S_KO0, S_KO1 = 70, 71

PITCH_QKV, PITCH_F = 6144, 7168
NST = 32

class Variant:
    def __init__(self, typ, halo, opt):
        self.pf = not opt
        self.npf = 3 if typ == 'X' else 4
        self.pf2_lanes = 4 if typ == 'X' else 3
        self.typ = typ
        self.halo = halo
        self.opt = opt
        self.ndma = 4 + (1 if opt else 0)
        self.name = f'{typ}_{halo if halo is not None else "n"}_{int(opt)}'

def mfma16(d, x, y, c=None):
    c = f'v[{d}:{d+3}]' if c is None else c
    return f'v_mfma_f32_16x16x32_bf16 v[{d}:{d+3}], {x}, {y}, {c}'

def w_read(var, j, slot, G):
    r = wring(G)
    if var.typ == 'X':
        c = j // 2; b = j % 2
        if c < 4: base = V_W + b; off = c * WCOL
        else:     base = V_W + 2 + b; off = 0
        off += slot * 4096; tstep = 512
    else:
        if j < 8:
            base = V_W + (j % 4); off = (j // 4) * WCOL + slot * 4096; tstep = 512
        else:
            base = V_W + 4; off = slot * 4096 + (j - 8) * 2048; tstep = 256
    return [f'ds_read_b64_tr_b16 {ar(r,2)}, v{base} offset:{off}',
            f'ds_read_b64_tr_b16 {ar(r+2,2)}, v{base} offset:{off+tstep}']

def x_read(var, i, slot, st):
    return f'ds_read_b128 {ar(A_X[st]+4*i,4)}, v{V_A} offset:{slot*ASTAGE + i*1024}'
def xh_read(var, slot, st):
    return f'ds_read_b128 {ar(A_XH[st],4)}, v{V_AH} offset:{slot*ASTAGE}'

NT_W = ''
ST_FL = ''
def dma_list(var, slot):
    D = []
    D.append((f's_add_u32 m0, s{S_M0A}, {slot*ASTAGE}',
              f'buffer_load_dwordx4 v{V_ADMA}, s[{S_XN}:{S_XN+3}], s{S_SOA} offen lds', None))
    D.append((None,
              f'buffer_load_dwordx4 v{V_ADMA}, s[{S_XN}:{S_XN+3}], s{S_SOA} offen offset:1024 lds',
              f's_add_u32 s{S_SOA}, s{S_SOA}, 2048'))
    D.append((f's_add_u32 m0, s{S_M0W}, {slot*4096}',
              f'buffer_load_dwordx4 v{V_WDMA}, s[{S_WM}:{S_WM+3}], s{S_SOW} offen{NT_W} lds',
              f's_add_u32 s{S_SOW}, s{S_SOW}, s{S_INCW}'))
    D.append((f's_add_u32 m0, s{S_M0W}, {slot*4096+2048}',
              f'buffer_load_dwordx4 v{V_WDMA}, s[{S_WM}:{S_WM+3}], s{S_SOW2} offen{NT_W} lds',
              f's_add_u32 s{S_SOW2}, s{S_SOW2}, s{S_INCW}'))
    if var.opt:
        D.append((f's_mov_b32 m0, s{S_M0O+slot}',
                  f'buffer_load_dwordx4 v{V_ODMA}, s[{S_OPT}:{S_OPT+3}], s{S_SOO} offen{NT_W} lds',
                  f's_add_u32 s{S_SOO}, s{S_SOO}, s{S_INCO}'))
    return D

def gen_mainloop(a, var, opt):
    if opt.get('sched', 'early') == 'early': return gen_mainloop_early(a, var, opt)
    return gen_mainloop_late(a, var, opt)

def gen_mainloop_late(a, var, opt):
    lab = f'L_loop_{var.name}'
    nomf = opt.get('no_mfma'); nodma = opt.get('no_dma')
    BG = opt.get('bar_group', 7)
    n = var.ndma
    if not nodma:
        for slot in range(4):
            for (pre, ld, post) in dma_list(var, slot):
                if pre: a(pre); a('s_nop 0')
                a(ld)
                if post: a(post)
    if opt.get('sentinel'):
        gen_sentinel_fill(a)
    for r in range(V_HACC, V_ACC + 160):
        a(f'v_mov_b32 v{r}, 0')
    extra = 6 if opt.get('sentinel') else 0
    a(f's_waitcnt vmcnt({0 if nodma else 3*n + extra})')
    a('s_barrier')
    if opt.get('ts'):
        a(f's_memtime s[{S_TS+2}:{S_TS+3}]'); a('s_memrealtime s[74:75]'); a('s_waitcnt lgkmcnt(0)')
    S = Sched()
    def first_reads(st):
        slot = st % 4; xs = st % 2
        R = [(x_read(var, 0, slot, xs), ('x', st, 0))]
        R += [(t, ('w', st, 0)) for t in w_read(var, 0, slot, 10 * st)]
        for i in range(1, 4): R.append((x_read(var, i, slot, xs), ('x', st, i)))
        if var.halo is not None: R.append((xh_read(var, slot, xs), ('xh', st)))
        R += [(t, ('w', st, 1)) for t in w_read(var, 1, slot, 10 * st + 1)]
        return R
    S.mark('pro')
    for (t, tag) in first_reads(0): S.read(t, tag)
    dpos = opt.get('dma_pos', [(8, 1), (8, 3), (9, 1), (9, 3), (0, 1)])
    for st in range(NST):
        S.mark(f'st{st}')
        slot = st % 4; xs = st % 2
        dm_prev = dma_list(var, (st - 1) % 4) if (st >= 1 and st + 3 < NST and not nodma) else []
        dm_this = dma_list(var, slot) if (st + 4 < NST and not nodma) else []
        fr = first_reads(st + 1) if st + 1 < NST else []
        for j in range(10):
            G = 10 * st + j
            fill = [[] for _ in range(4)]
            wl = []
            if j == 0: wl = [2, 3]
            elif j <= 6: wl = [j + 3]
            q = 0
            for jn in wl:
                for t in w_read(var, jn, slot, 10 * st + jn):
                    fill[min(q, 3)].append(('r', (t, ('w', st, jn)))); q += 1
            if j > BG and fr:
                ng = 9 - BG
                per = -(-len(fr) // ng)
                chunk = fr[(j - BG - 1) * per:(j - BG) * per]
                for q, x in enumerate(chunk): fill[min(q * 4 // max(len(chunk), 1), 3)].append(('r', x))
            for idx, (g, gap) in enumerate(dpos):
                dm = dm_this if g > BG else dm_prev
                if g == j and idx < len(dm):
                    pre, ld, post = dm[idx]
                    if pre: fill[gap - 1].append(('o', pre))
                    fill[gap].append(('o', ld))
                    if post: fill[gap].append(('o', post))
            W = ar(wring(G), 4)
            for i in range(4):
                X = ar(A_X[xs] + 4 * i, 4)
                needs = [('w', st, j), ('x', st, i)]
                if var.typ == 'X' and j in (4, 5): t = mfma16(acc(j, i), X, W)
                else: t = mfma16(acc(j, i), W, X)
                if nomf: t = 's_nop 0'
                S.op(t, needs)
                if i == 1 and var.halo == j:
                    XH = ar(A_XH[xs], 4)
                    t = mfma16(V_HACC, XH, W) if j in (4, 5) else mfma16(V_HACC, W, XH)
                    S.op('s_nop 0' if nomf else t, [('xh', st)])
                for kind, x in fill[i]:
                    if kind == 'r': S.read(x[0], x[1])
                    else: S.op(x)
            if j == BG and st + 1 < NST:
                later = max(0, min(NST - 1, st + 3) - (st + 1))
                S.op(f's_waitcnt vmcnt({0 if nodma else later * n})', [('w', st, 9)])
                if not opt.get('no_barrier'): S.op('s_barrier')
        if st == NST - 1: S.op('s_barrier')
    segs = S.finalize()
    for k in range(1, 6):
        for s in range(4):
            assert segs[f'st{1+4*k+s}'] == segs[f'st{1+s}'], (k, s)
    a.extend(segs['pro'])
    a.extend(segs['st0'])
    a(f's_mov_b32 s{S_CNT}, 6')
    a('.p2align 3')
    a.label(lab)
    for s in range(1, 5): a.extend(segs[f'st{s}'])
    a(f's_sub_u32 s{S_CNT}, s{S_CNT}, 1')
    a(f's_cmp_lg_u32 s{S_CNT}, 0')
    a(f's_cbranch_scc1 {lab}')
    for s in range(25, 30): a.extend(segs[f'st{s}'])
    if opt.get('pf_w2'):
        gen_w2_prefetch(a)
    for s in range(30, 32): a.extend(segs[f'st{s}'])


V_PF, V_PF2, V_PF3, V_PFD = 28, 29, 30, 31
V_SENT, V_SENTA = 24, 23
S_PF, S_PF2, S_PF3, S_SENT = 80, 84, 88, 96
S_PFO, S_PFI, S_SENTO = 92, 93, 94
PFD = 8

def pf_list(var, opt, st):
    P = []
    if opt.get('fused'): return P
    if var.pf and opt.get('pf_w1x') and st <= 23:
        P.append([f'buffer_load_dword v{V_PFD}, v{V_PF}, s[{S_PF}:{S_PF+3}], s{S_PFO} offen',
                  f's_add_u32 s{S_PFO}, s{S_PFO}, s{S_PFI}'])
    if var.pf and opt.get('pf_w2') == 2 and st <= 23:
        P.append([f'buffer_load_dword v{V_PFD}, v{V_PF2}, s[{S_PF2}:{S_PF2+3}], 0 offen',
                  f'v_add_u32 v{V_PF2}, {var.pf2_lanes*128}, v{V_PF2}'])
    if var.pf and opt.get('pf_w2') == 2 and st == 24:
        P.append([f'buffer_load_dword v{V_PFD}, v{V_PF3}, s[{S_PF3}:{S_PF3+3}], 0 offen'])
    if opt.get('sentinel') == 2 and st % 4 == 1 and st < 24:
        P.append([f'buffer_store_dwordx4 v[{V_SENT}:{V_SENT+3}], v{V_SENTA}, s[{S_SENT}:{S_SENT+3}], s{S_SENTO} offen',
                  f's_add_u32 s{S_SENTO}, s{S_SENTO}, 1024'])
    return P

def gen_mainloop_early(a, var, opt):
    lab = f'L_loop_{var.name}'
    nomf = opt.get('no_mfma'); nodma = opt.get('no_dma')
    n = var.ndma
    fused = opt.get('fused')
    if not nodma and not fused:
        for slot in range(3):
            for (pre, ld, post) in dma_list(var, slot):
                if pre: a(pre); a('s_nop 0')
                a(ld)
                if post: a(post)
    extra = 0
    if fused:
        pass
    elif opt.get('sentinel') == 1:
        gen_sentinel_fill(a); extra = 6
    if var.pf and opt.get('pf_w1x'):
        a(f's_mul_i32 s{S_T}, s{S_PFI}, 3')
        for t in range(3, PFD):
            a(f'buffer_load_dword v{V_PFD}, v{V_PF}, s[{S_PF}:{S_PF+3}], s{S_T} offen')
            a(f's_add_u32 s{S_T}, s{S_T}, s{S_PFI}')
            extra += 1
    if fused:
        a('s_waitcnt vmcnt(4)')
    else:
        for r in range(V_HACC, V_ACC + 160):
            a(f'v_mov_b32 v{r}, 0')
        a(f's_waitcnt vmcnt({0 if nodma else 2*n + extra})')
    a('s_barrier')
    if opt.get('ts'):
        a(f's_memtime s[{S_TS+2}:{S_TS+3}]')
        if not fused: a('s_memrealtime s[74:75]')
        a('s_waitcnt lgkmcnt(0)')
    S = Sched()
    XG = opt.get('x_groups', [3, 4, 5, 6])
    HG = opt.get('xh_group', 2)
    def preread_x(st_next, grp):
        out = []
        slot = st_next % 4; st = st_next % 2
        for i in range(4):
            if XG[i] == grp: out.append((x_read(var, i, slot, st), ('x', st_next, i)))
        if var.halo is not None and HG == grp:
            out.append((xh_read(var, slot, st), ('xh', st_next)))
        return out
    S.mark('pro')
    for grp in range(10):
        if grp >= 7:
            for q, t in enumerate(w_read(var, grp - 7, 0, grp - 7)):
                S.read(t, ('w', 0, grp - 7))
        for (t, tag) in preread_x(0, grp): S.read(t, tag)
    S.op(f's_waitcnt vmcnt({2 if fused else (0 if nodma else n + extra)})')
    S.op('s_barrier')
    dgrp = opt.get('dma_groups', [0, 1, 2, 3, 4])
    pgrp = opt.get('pf_groups', [5, 6, 7, 8])
    Q = [('d', 2)] * n + [('p',)] * extra
    for st in range(NST):
        S.mark(f'st{st}')
        slot = st % 4; xs = st % 2
        dm = dma_list(var, (st + 3) % 4) if (st + 3 < NST and not nodma) else []
        pf = pf_list(var, opt, st)
        for j in range(10):
            G = 10 * st + j
            fill = [[] for _ in range(4)]
            jn = j + 3
            if jn < 10: wr = [(t, ('w', st, jn)) for t in w_read(var, jn, slot, G + 3)]
            elif st + 1 < NST: wr = [(t, ('w', st + 1, jn - 10)) for t in w_read(var, jn - 10, (st + 1) % 4, G + 3)]
            else: wr = []
            for q, x in enumerate(wr): fill[q].append(('r', x))
            if st + 1 < NST:
                for x in preread_x(st + 1, j): fill[2].append(('r', x))
            cnt = 0
            for di, g in enumerate(dgrp):
                if g == j and di < len(dm):
                    pre, ld, post = dm[di]
                    gap = 3 if cnt == 0 else (1 if cnt == 1 else 2)
                    if pre: fill[gap - 1].append(('o', pre))
                    fill[gap].append(('o', ld))
                    if post: fill[gap].append(('o', post))
                    Q.append(('d', st + 3)); cnt += 1
            for pi, g in enumerate(pgrp):
                if g == j and pi < len(pf):
                    for x in pf[pi]: fill[3].append(('o', x))
                    Q.append(('p',))
            W = ar(wring(G), 4)
            for i in range(4):
                X = ar(A_X[xs] + 4 * i, 4)
                needs = [('w', st, j), ('x', st, i)]
                if var.typ == 'X' and j in (4, 5): t = mfma16(acc(j, i), X, W)
                else: t = mfma16(acc(j, i), W, X)
                if nomf: t = 's_nop 0'
                S.op(t, needs)
                if i == 1 and var.halo == j:
                    XH = ar(A_XH[xs], 4)
                    t = mfma16(V_HACC, XH, W) if j in (4, 5) else mfma16(V_HACC, W, XH)
                    S.op('s_nop 0' if nomf else t, [('xh', st)])
                for kind, x in fill[i]:
                    if kind == 'r': S.read(x[0], x[1])
                    else: S.op(x)
        if st + 2 < NST:
            last = max([q for q, e in enumerate(Q) if e == ('d', st + 2)], default=-1)
            Q = Q[last + 1:]
            S.op(f's_waitcnt vmcnt({0 if nodma else len(Q)})')
        if not opt.get('no_barrier') or st == NST - 1: S.op('s_barrier')
    segs = S.finalize()
    a.extend(segs['pro'])
    body0 = [segs[f'st{s}'] for s in range(4)]
    body1 = [segs[f'st{4+s}'] for s in range(4)]
    for k in range(2, 6):
        for s in range(4):
            assert segs[f'st{4*k+s}'] == body1[s], (k, s)
    if body0 == body1:
        nit = 6
    else:
        for s in range(4): a.extend(body0[s])
        nit = 5
    a(f's_mov_b32 s{S_CNT}, {nit}')
    a('.p2align 3')
    a.label(lab)
    for s in range(4): a.extend(body1[s])
    a(f's_sub_u32 s{S_CNT}, s{S_CNT}, 1')
    a(f's_cmp_lg_u32 s{S_CNT}, 0')
    a(f's_cbranch_scc1 {lab}')
    for s in range(24, 30): a.extend(segs[f'st{s}'])
    if opt.get('pf_w2') == 1: gen_w2_prefetch(a)
    for s in range(30, 32): a.extend(segs[f'st{s}'])

from k0 import WS_SLAB
def gen_sentinel_fill(a):
    a('s_load_dwordx2 s[94:95], s[0:1], 72')
    a(f's_mul_i32 s98, s2, {48*1024}'); a(f's_mul_i32 s99, s{S_W}, 6144'); a('s_add_u32 s98, s98, s99')
    a(f'v_lshlrev_b32 v30, 4, v{V_LANE}')
    for q in range(4): a(f'v_mov_b32 v{24+q}, -1')
    a('s_waitcnt lgkmcnt(0)')
    a(f's_add_u32 s84, s94, {WS_SLAB}'); a('s_addc_u32 s85, s95, 0'); a('s_and_b32 s85, s85, 0xffff')
    a(f's_mov_b32 s86, {12 << 20}'); a('s_mov_b32 s87, 0x20000')
    for q in range(6):
        a(f's_add_u32 s99, s98, {q*1024}')
        a('buffer_store_dwordx4 v[24:27], v30, s[84:87], s99 offen')

def gen_w2_prefetch(a):
    a('s_load_dwordx2 s[94:95], s[0:1], 16')
    a('s_load_dwordx2 s[96:97], s[0:1], 48')
    a(f's_mul_i32 s98, s2, 288'); a(f's_mul_i32 s99, s{S_W}, 36'); a('s_add_u32 s98, s98, s99')
    a(f'v_add_u32 v30, s98, v{V_LANE}')
    a('v_lshlrev_b32 v30, 7, v30')
    a(f'v_cmp_gt_u32 vcc, 36, v{V_LANE}')
    a('s_nop 1')
    a('v_mov_b32 v28, 0x7ffffff0')
    a('v_cndmask_b32 v30, v28, v30, vcc')
    a('s_waitcnt lgkmcnt(0)')
    a('s_mov_b32 s84, s94'); a('s_and_b32 s85, s95, 0xffff'); a(f's_mov_b32 s86, {1024*2048}'); a('s_mov_b32 s87, 0x20000')
    a('buffer_load_dword v31, v30, s[84:87], 0 offen')
    a(f'v_subrev_u32 v29, {1024*2048}, v30')
    a('s_mov_b32 s88, s96'); a('s_and_b32 s89, s97, 0xffff'); a(f's_mov_b32 s90, {3584*2048}'); a('s_mov_b32 s91, 0x20000')
    a('buffer_load_dword v31, v29, s[88:91], 0 offen')

C1 = -2.0 * math.sqrt(2.0 / math.pi) * math.log2(math.e)
C2 = C1 * 0.044715
def fbits(x): return '0x%08x' % struct.unpack('<I', struct.pack('<f', x))[0]
S_C2 = 56
V_C1 = 12
V_ONE = 14
V_G = 16

def p2(r): return f'v[{r}:{r+1}]'

def gelu_pair(a, tiles, dst, tmp=V_G):
    n = len(tiles)
    T = [(tmp + 4 * q) for q in range(n)]
    for q, (G, U) in enumerate(tiles):
        for h in (0, 2): a(f'v_pk_mul_f32 {p2(T[q]+h)}, {p2(G+h)}, {p2(G+h)}')
    for q, (G, U) in enumerate(tiles):
        for h in (0, 2): a(f'v_pk_fma_f32 {p2(T[q]+h)}, {p2(T[q]+h)}, s[{S_C2}:{S_C2+1}], {p2(V_C1)}')
    for q, (G, U) in enumerate(tiles):
        for h in (0, 2): a(f'v_pk_mul_f32 {p2(T[q]+h)}, {p2(T[q]+h)}, {p2(G+h)}')
    for q, (G, U) in enumerate(tiles):
        for e in range(4): a(f'v_exp_f32 v{T[q]+e}, v{T[q]+e}')
    for q, (G, U) in enumerate(tiles):
        for h in (0, 2): a(f'v_pk_mul_f32 {p2(U+h)}, {p2(U+h)}, {p2(G+h)}')
    for q, (G, U) in enumerate(tiles):
        for h in (0, 2): a(f'v_pk_add_f32 {p2(T[q]+h)}, {p2(T[q]+h)}, {p2(V_ONE)}')
    for q, (G, U) in enumerate(tiles):
        for e in range(4): a(f'v_rcp_f32 v{T[q]+e}, v{T[q]+e}')
    a('s_nop 0')
    for q, (G, U) in enumerate(tiles):
        for h in (0, 2): a(f'v_pk_mul_f32 {p2(U+h)}, {p2(U+h)}, {p2(T[q]+h)}')
    for q, (G, U) in enumerate(tiles):
        a(f'v_cvt_pk_bf16_f32 v{dst+2*q}, v{U}, v{U+1}')
        a(f'v_cvt_pk_bf16_f32 v{dst+2*q+1}, v{U+2}, v{U+3}')

def store4(a, vdata, soff):
    a(f'buffer_store_dwordx4 v[{vdata}:{vdata+3}], v{V_ST}, s[{S_OUT}:{S_OUT+3}], s{soff} offen{ST_FL}')

def epi_common(a):
    a('s_nop 15')
    a(f's_mov_b32 s{S_C2}, {fbits(C2)}'); a(f's_mov_b32 s{S_C2+1}, {fbits(C2)}')
    a(f'v_mov_b32 v{V_C1}, {fbits(C1)}'); a(f'v_mov_b32 v{V_C1+1}, {fbits(C1)}')
    a(f'v_mov_b32 v{V_ONE}, 1.0'); a(f'v_mov_b32 v{V_ONE+1}, 1.0')
    a(f'v_lshlrev_b32 v{V_ST}, 4, v{V_LANE}')
    a(f's_lshl_b32 s{S_T}, s{S_MT}, 3')
    a(f's_lshl_b32 s{S_T+1}, s{S_WMI}, 1')
    a(f's_add_u32 s{S_T}, s{S_T}, s{S_T+1}')
    a(f's_mul_i32 s{S_T+2}, s{S_T}, {A2_MB_STRIDE}')

def ioff(i): return (i >> 1) * A2_MB_STRIDE + (i & 1) * 1024

def gen_epilogue(a, typ, opt):
    epi_common(a)
    if typ == 'Y':
        for i in range(4):
            for fr in range(2):
                G0, G1 = acc(2*fr, i), acc(2*fr+1, i); U0, U1 = acc(4+2*fr, i), acc(5+2*fr, i)
                gelu_pair(a, [(G0, U0), (G1, U1)], G0)
                a(f's_add_u32 s{S_T+5}, s{S_T+2}, s{S_KO0}')
                a(f's_add_u32 s{S_T+5}, s{S_T+5}, {fr*2048 + ioff(i)}')
                store4(a, G0, S_T + 5)
        a(f's_lshl_b32 s{S_T+6}, s{S_WNI}, 3')
        a(f's_add_u32 s{S_KO1}, s{S_KO1}, s{S_T+6}')
        for i in (0, 2):
            gelu_pair(a, [(acc(8, i), acc(9, i)), (acc(8, i+1), acc(9, i+1))], acc(8, i))
            for q in range(2):
                a(f's_add_u32 s{S_T+5}, s{S_T+2}, s{S_KO1}')
                a(f's_add_u32 s{S_T+5}, s{S_T+5}, {ioff(i+q)}')
                d = acc(8, i) + 2*q
                a(f'buffer_store_dwordx2 v[{d}:{d+1}], v{V_ST}, s[{S_OUT}:{S_OUT+3}], s{S_T+5} offen{ST_FL}')
    else:
        if not opt.get('no_attn'):
            gen_attention_head(a, opt)
        for i in range(4):
            gelu_pair(a, [(acc(6, i), acc(8, i)), (acc(7, i), acc(9, i))], acc(6, i))
            a(f's_add_u32 s{S_T+5}, s{S_T+2}, s{S_KO0}')
            a(f's_add_u32 s{S_T+5}, s{S_T+5}, {ioff(i)}')
            store4(a, acc(6, i), S_T + 5)
        if not opt.get('no_attn'):
            gen_attention_tail(a, opt)

XCH = 0
S_PAR, S_MC0, S_MC1, S_MP0, S_MP1, S_MQ0, S_MQ1 = 80, 82, 84, 86, 88, 90, 92
S_SC = 58
V_SEL0, V_SEL1, V_NEG, V_XA = 32, 33, 34, 35
def sp(r): return f's[{r}:{r+1}]'

def gen_attention_head(a, opt):
    a(f'v_lshlrev_b32 v{V_XA}, 3, v{V_LANE}')
    a(f's_lshl_b32 s{S_T+3}, s{S_WNI}, 13')
    a(f'v_add_u32 v{V_XA}, s{S_T+3}, v{V_XA}')
    a(f'v_cvt_pk_bf16_f32 v16, v{V_HACC}, v{V_HACC+1}')
    a(f'v_cvt_pk_bf16_f32 v17, v{V_HACC+2}, v{V_HACC+3}')
    a(f's_lshl_b32 s{S_T+3}, s{S_WMI}, 9')
    a(f'v_add_u32 v18, s{S_T+3}, v{V_XA}')
    a(f'ds_write_b64 v18, v[16:17] offset:{XCH}')
    for p, j in enumerate((2, 3, 4, 5)):
        A = acc(j, 3)
        a(f'v_cvt_pk_bf16_f32 v{20+2*p}, v{A}, v{A+1}')
        a(f'v_cvt_pk_bf16_f32 v{21+2*p}, v{A+2}, v{A+3}')
    a(f's_lshl_b32 s{S_T+3}, s{S_WMI}, 11')
    a(f'v_add_u32 v{V_XA}, s{S_T+3}, v{V_XA}')
    a(f's_cmp_eq_u32 s{S_WMI}, 3')
    a('s_cbranch_scc1 L_k1_noxw')
    for p in range(4):
        a(f'ds_write_b64 v{V_XA}, v[{20+2*p}:{21+2*p}] offset:{XCH + 2048 + p*512}')
    a.label('L_k1_noxw')
    a('s_waitcnt lgkmcnt(0)')
    a('s_barrier')

def gen_attention_tail(a, opt):
    VA = (168, 178)
    KP = 188
    ONES = 192
    L = V_LANE
    a(f'ds_read_b64 v[{KP}:{KP+1}], v{V_XA} offset:{XCH}')
    a(f'ds_read_b64 v[{KP+2}:{KP+3}], v{V_XA} offset:{XCH+512}')
    a(f'ds_read_b64 v[{VA[0]}:{VA[0]+1}], v{V_XA} offset:{XCH+1024}')
    a(f'ds_read_b64 v[{VA[1]}:{VA[1]+1}], v{V_XA} offset:{XCH+1536}')
    a(f'v_and_b32 v16, 15, v{L}')
    a(f'v_lshrrev_b32 v17, 4, v{L}')
    a(f'v_and_b32 v18, 1, v{L}')
    a(f'v_cmp_eq_u32 {sp(S_PAR)}, 1, v18')
    a('v_lshl_add_u32 v17, v17, 2, v18')
    a('v_add_u32 v19, 2, v17')
    a(f'v_cmp_le_u32 {sp(S_MC0)}, v17, v16')
    a(f'v_cmp_le_u32 {sp(S_MC1)}, v19, v16')
    a('v_add_u32 v16, 2, v16')
    a(f'v_cmp_ge_u32 {sp(S_MP0)}, v17, v16')
    a(f'v_cmp_ge_u32 {sp(S_MP1)}, v19, v16')
    a(f's_or_b32 s{S_T+3}, s{S_MT}, s{S_WMI}')
    a(f's_cmp_eq_u32 s{S_T+3}, 0')
    a('s_nop 1')
    a(f's_cselect_b64 {sp(S_MQ0)}, 0, {sp(S_MP0)}')
    a(f's_cselect_b64 {sp(S_MQ1)}, 0, {sp(S_MP1)}')
    a(f'v_mov_b32 v{V_SEL0}, 0x0c0c0100'); a('v_mov_b32 v16, 0x01000c0c')
    a(f'v_cndmask_b32 v{V_SEL0}, v{V_SEL0}, v16, {sp(S_PAR)}')
    a(f'v_mov_b32 v{V_SEL1}, 0x0c0c0302'); a('v_mov_b32 v16, 0x03020c0c')
    a(f'v_cndmask_b32 v{V_SEL1}, v{V_SEL1}, v16, {sp(S_PAR)}')
    a(f'v_mov_b32 v{V_NEG}, 0xff000000')
    a(f's_mov_b32 s{S_SC}, {fbits(32 ** -0.5 * math.log2(math.e))}')
    for q in range(4): a(f'v_mov_b32 v{ONES+q}, 0x3f803f80')
    for i in range(4):
        for j0 in (0, 2):
            A, B = acc(j0, i), acc(j0 + 1, i)
            a(f'v_cvt_pk_bf16_f32 v{A}, v{A}, v{A+1}')
            a(f'v_cvt_pk_bf16_f32 v{A+1}, v{A+2}, v{A+3}')
            a(f'v_cvt_pk_bf16_f32 v{A+2}, v{B}, v{B+1}')
            a(f'v_cvt_pk_bf16_f32 v{A+3}, v{B+2}, v{B+3}')
        for b in range(2):
            A = acc(4 + b, i); D = VA[b] + 2 + 2 * i
            a(f'v_cvt_pk_bf16_f32 v{D}, v{A}, v{A+1}')
            a(f'v_cvt_pk_bf16_f32 v{D+1}, v{A+2}, v{A+3}')
    a('s_waitcnt lgkmcnt(0)')
    a('s_nop 1')
    def t4(r): return f'v[{r}:{r+3}]'
    SC = [acc(1, i) for i in range(4)]; SP = [acc(3, i) for i in range(4)]
    for i in range(4):
        a(mfma16(SC[i], t4(acc(2, i)), t4(acc(0, i)), '0'))
        kp = KP if i == 0 else acc(2, i - 1)
        a(mfma16(SP[i], t4(kp), t4(acc(0, i)), '0'))
    a('s_nop 7')
    for i in range(4):
        for T in (SC[i], SP[i]):
            a(f'v_cndmask_b32 v{T}, v{T}, v{T+1}, {sp(S_PAR)}')
            a(f'v_cndmask_b32 v{T+1}, v{T+2}, v{T+3}, {sp(S_PAR)}')
    for i in range(4):
        m0, m1 = (S_MQ0, S_MQ1) if i == 0 else (S_MP0, S_MP1)
        a(f'v_cndmask_b32 v{SC[i]}, v{V_NEG}, v{SC[i]}, {sp(S_MC0)}')
        a(f'v_cndmask_b32 v{SC[i]+1}, v{V_NEG}, v{SC[i]+1}, {sp(S_MC1)}')
        a(f'v_cndmask_b32 v{SP[i]}, v{V_NEG}, v{SP[i]}, {sp(m0)}')
        a(f'v_cndmask_b32 v{SP[i]+1}, v{V_NEG}, v{SP[i]+1}, {sp(m1)}')
    M = [SC[i] + 2 for i in range(4)]; T2 = [SC[i] + 3 for i in range(4)]
    for i in range(4): a(f'v_max3_f32 v{M[i]}, v{SC[i]}, v{SC[i]+1}, v{SP[i]}')
    for i in range(4): a(f'v_max_f32 v{M[i]}, v{M[i]}, v{SP[i]+1}')
    for swap in ('v_permlane16_swap_b32', 'v_permlane32_swap_b32'):
        for i in range(4): a(f'v_mov_b32 v{T2[i]}, v{M[i]}')
        a('s_nop 0')
        for i in range(4): a(f'{swap} v{M[i]}, v{T2[i]}')
        a('s_nop 0')
        for i in range(4): a(f'v_max_f32 v{M[i]}, v{M[i]}, v{T2[i]}')
    for i in range(4): a(f'v_mul_f32 v{M[i]}, s{S_SC}, v{M[i]}')
    for i in range(4):
        for r in (SC[i], SC[i] + 1, SP[i], SP[i] + 1):
            a(f'v_fma_f32 v{r}, v{r}, s{S_SC}, -v{M[i]}')
    for i in range(4):
        for r in (SC[i], SC[i] + 1, SP[i], SP[i] + 1):
            a(f'v_exp_f32 v{r}, v{r}')
    a('s_nop 0')
    for i in range(4):
        a(f'v_cvt_pk_bf16_f32 v{SP[i]+2}, v{SP[i]}, v{SP[i]+1}')
        a(f'v_cvt_pk_bf16_f32 v{SP[i]+3}, v{SC[i]}, v{SC[i]+1}')
    for i in range(4):
        P = acc(0, i)
        a(f'v_perm_b32 v{P}, v{SP[i]+2}, v{SP[i]+2}, v{V_SEL0}')
        a(f'v_perm_b32 v{P+1}, v{SP[i]+2}, v{SP[i]+2}, v{V_SEL1}')
        a(f'v_perm_b32 v{P+2}, v{SP[i]+3}, v{SP[i]+3}, v{V_SEL0}')
        a(f'v_perm_b32 v{P+3}, v{SP[i]+3}, v{SP[i]+3}, v{V_SEL1}')
    a('s_nop 1')
    O0 = [acc(4, i) for i in range(4)]; O1 = [acc(5, i) for i in range(4)]; SM = [acc(2, i) for i in range(4)]
    for i in range(4):
        a(mfma16(SM[i], t4(ONES), t4(acc(0, i)), '0'))
        a(mfma16(O0[i], t4(VA[0] + 2 * i), t4(acc(0, i)), '0'))
        a(mfma16(O1[i], t4(VA[1] + 2 * i), t4(acc(0, i)), '0'))
    a('s_nop 7')
    for i in range(4): a(f'v_rcp_f32 v{SM[i]}, v{SM[i]}')
    a('s_nop 0')
    for i in range(4):
        for T in (O0[i], O1[i]):
            for r in range(4): a(f'v_mul_f32 v{T+r}, v{T+r}, v{SM[i]}')
    a(f's_lshl_b32 s{S_T+6}, s{S_NT}, 1')
    a(f's_add_u32 s{S_T+6}, s{S_T+6}, s{S_WNI}')
    a(f's_lshl_b32 s{S_T+6}, s{S_T+6}, 11')
    a(f's_add_u32 s{S_T+6}, s{S_T+6}, s{S_T+2}')
    for i in range(4):
        D = SC[i]
        a(f'v_cvt_pk_bf16_f32 v{D}, v{O0[i]}, v{O0[i]+1}')
        a(f'v_cvt_pk_bf16_f32 v{D+1}, v{O0[i]+2}, v{O0[i]+3}')
        a(f'v_cvt_pk_bf16_f32 v{D+2}, v{O1[i]}, v{O1[i]+1}')
        a(f'v_cvt_pk_bf16_f32 v{D+3}, v{O1[i]+2}, v{O1[i]+3}')
        a(f's_add_u32 s{S_T+5}, s{S_T+6}, {ioff(i)}')
        store4(a, D, S_T + 5)


def gen_pf_setup(a, typ, opt):
    L = V_LANE
    SZQ, SZF = 1024 * PITCH_QKV, 1024 * PITCH_F
    lab = a.uid('L_pf')
    a('s_load_dwordx2 s[94:95], s[0:1], 16')
    a('s_load_dwordx2 s[96:97], s[0:1], 48')
    a('v_mov_b32 v22, 0x7ffffff0')
    if typ == 'X':
        a(f's_cmp_eq_u32 s{S_W}, 3'); a('s_cselect_b32 s49, 0, 1')
        a(f's_cmp_eq_u32 s{S_W}, 7'); a('s_cselect_b32 s49, 2, s49')
        a(f's_lshl_b32 s50, s{S_NT}, 7')
        a('s_cmp_eq_u32 s49, 0')
        a('s_cselect_b32 s52, s4, s8'); a('s_cselect_b32 s53, s5, s9')
        a(f's_mov_b32 s54, {SZF}'); a(f's_mov_b32 s55, {PITCH_F}')
        a(f's_cselect_b32 s54, {SZQ}, s54'); a(f's_cselect_b32 s55, {PITCH_QKV}, s55')
        a('s_cselect_b32 s51, 12, 4')
        a('s_cmp_eq_u32 s49, 2')
        a('s_cselect_b32 s52, s10, s52'); a('s_cselect_b32 s53, s11, s53')
        colstep = 11
    else:
        a(f's_sub_u32 s49, s{S_W}, 4'); a('s_and_b32 s49, s49, 3')
        a(f's_mul_i32 s50, s{S_NT}, 320'); a('s_add_u32 s50, s50, 2048'); a('s_andn2_b32 s50, s50, 127')
        a('s_cmp_eq_u32 s49, 1')
        a('s_cselect_b32 s52, s10, s8'); a('s_cselect_b32 s53, s11, s9')
        a(f's_mov_b32 s54, {SZF}'); a(f's_mov_b32 s55, {PITCH_F}')
        a('s_cmp_lt_u32 s49, 2'); a('s_cselect_b32 s51, 12, 0')
        colstep = 7
    a(f's_mov_b32 s{S_PF}, s52'); a(f's_and_b32 s{S_PF+1}, s53, 0xffff'); a(f's_mov_b32 s{S_PF+2}, s54'); a(f's_mov_b32 s{S_PF+3}, 0x20000')
    a(f's_lshl_b32 s{S_PFI}, s55, 5')
    a(f's_mul_i32 s{S_PFO}, s{S_PFI}, {PFD}')
    a(f'v_and_b32 v20, 3, v{L}')
    a(f's_lshl_b32 s54, s{S_MT}, 2')
    a('v_add_u32 v20, s54, v20')
    a('v_mul_lo_u32 v20, v20, s55')
    a(f'v_lshrrev_b32 v21, 2, v{L}')
    a(f'v_lshl_add_u32 v20, v21, {colstep}, v20')
    a('v_add_u32 v20, s50, v20')
    a(f'v_cmp_gt_u32 vcc, s51, v{L}')
    a('s_nop 1')
    a(f'v_cndmask_b32 v{V_PF}, v22, v20, vcc')
    npf = 3 if typ == 'X' else 4; lanes = 4 if typ == 'X' else 3
    per = -(-224 // npf); per3 = -(-64 // npf)
    a('s_mul_i32 s50, s2, 224'); a(f's_mul_i32 s51, s49, {per}'); a('s_add_u32 s50, s50, s51')
    a(f'v_add_u32 v20, s50, v{L}'); a('v_lshlrev_b32 v20, 7, v20')
    a(f'v_cmp_gt_u32 vcc, {lanes}, v{L}')
    a('s_nop 1')
    a(f'v_cndmask_b32 v{V_PF2}, v22, v20, vcc')
    a('s_lshl_b32 s50, s2, 6'); a(f's_mul_i32 s51, s49, {per3}'); a('s_add_u32 s50, s50, s51')
    a(f'v_add_u32 v20, s50, v{L}'); a('v_lshlrev_b32 v20, 7, v20')
    a(f'v_cmp_gt_u32 vcc, {per3}, v{L}')
    a('s_nop 1')
    a(f'v_cndmask_b32 v{V_PF3}, v22, v20, vcc')
    a('s_waitcnt lgkmcnt(0)')
    a(f's_mov_b32 s{S_PF3}, s94'); a(f's_and_b32 s{S_PF3+1}, s95, 0xffff'); a(f's_mov_b32 s{S_PF3+2}, {1024*2048}'); a(f's_mov_b32 s{S_PF3+3}, 0x20000')
    a(f's_mov_b32 s{S_PF2}, s96'); a(f's_and_b32 s{S_PF2+1}, s97, 0xffff'); a(f's_mov_b32 s{S_PF2+2}, {3584*2048}'); a(f's_mov_b32 s{S_PF2+3}, 0x20000')
    if opt.get('sentinel') == 2:
        a(f's_add_u32 s{S_SENT}, s6, {WS_SLAB}'); a(f's_addc_u32 s{S_SENT+1}, s7, 0'); a(f's_and_b32 s{S_SENT+1}, s{S_SENT+1}, 0xffff')
        a(f's_mov_b32 s{S_SENT+2}, {12 << 20}'); a(f's_mov_b32 s{S_SENT+3}, 0x20000')
        a(f's_mul_i32 s{S_SENTO}, s2, {48*1024}'); a(f's_mul_i32 s50, s{S_W}, 6144'); a(f's_add_u32 s{S_SENTO}, s{S_SENTO}, s50')
        a(f'v_lshlrev_b32 v{V_SENTA}, 4, v{L}')
        for q in range(4): a(f'v_mov_b32 v{V_SENT+q}, -1')

def gen_k1(opt, name='gemm1_kernel'):
    global NT_W, ST_FL
    NT_W = ' nt' if opt.get('nt_w1') else ''
    ST_FL = (' ' + opt['st_fl']) if opt.get('st_fl') else ''
    a = Asm()
    a('s_cmp_ge_u32 s2, 256')
    a('s_cbranch_scc1 L_k1_end')
    if opt.get('ts'):
        a(f's_memtime s[{S_TS}:{S_TS+1}]')
        a('s_memrealtime s[72:73]')
    a('s_load_dwordx2 s[4:5], s[0:1], 8')
    a('s_load_dwordx4 s[8:11], s[0:1], 32')
    a('s_load_dwordx2 s[6:7], s[0:1], 72')
    fused = opt.get('fused')
    if fused:
        import fuse, k2
        a('s_load_dwordx2 s[94:95], s[0:1], 0')
        a('s_load_dwordx2 s[100:101], s[0:1], 64')
    a('v_lshrrev_b32 v12, 6, v0')
    a(f'v_and_b32 v{V_LANE}, 63, v0')
    a('s_nop 0')
    a(f'v_readfirstlane_b32 s{S_W}, v12')
    a('s_and_b32 s46, s2, 7')
    a('s_lshr_b32 s47, s2, 3')
    a(f's_lshr_b32 s{S_MT}, s47, 2')
    a('s_and_b32 s47, s47, 3')
    a('s_lshl_b32 s46, s46, 2')
    a('s_add_u32 s46, s46, s47')
    a(f's_lshr_b32 s{S_NT}, s46, 1')
    a('s_and_b32 s48, s46, 1')
    a(f's_and_b32 s{S_WMI}, s{S_W}, 3')
    a(f's_lshr_b32 s{S_WNI}, s{S_W}, 2')
    a('s_waitcnt lgkmcnt(0)')
    a(f's_add_u32 s{S_XN}, s6, {WS_XN}'); a(f's_addc_u32 s{S_XN+1}, s7, 0'); a(f's_and_b32 s{S_XN+1}, s{S_XN+1}, 0xffff')
    a(f's_mov_b32 s{S_XN+2}, 0x400000'); a(f's_mov_b32 s{S_XN+3}, 0x20000')
    a(f's_add_u32 s{S_OUT}, s6, {WS_A2}'); a(f's_addc_u32 s{S_OUT+1}, s7, 0'); a(f's_and_b32 s{S_OUT+1}, s{S_OUT+1}, 0xffff')
    a(f's_mov_b32 s{S_OUT+2}, {(64<<20) if (opt.get("dbg_qkv") or opt.get("ts")) else WS_A2_SIZE}'); a(f's_mov_b32 s{S_OUT+3}, 0x20000')
    L = V_LANE
    if fused:
        a(f's_mov_b32 s{fuse.S_DBG}, s100'); a(f's_and_b32 s{fuse.S_DBG+1}, s101, 0xffff')
        a(f's_mov_b32 s{fuse.S_DBG+2}, 256'); a(f's_mov_b32 s{fuse.S_DBG+3}, 0x20000')
        fuse.gen_ln_load(a, opt)
    a(f's_lshl_b32 s49, s{S_MT}, 3')
    a(f's_add_u32 s49, s49, s{S_W}')
    a('s_lshl_b32 s49, s49, 16')
    a(f'v_lshlrev_b32 v12, 4, v{L}')
    a(f'v_add_u32 v{V_ADMA}, s49, v12')
    a(f's_lshl_b32 s{S_M0A}, s{S_W}, 11')
    a(f's_mov_b32 s{S_SOA}, 0')
    a(f's_lshl_b32 s49, s{S_WMI}, 12')
    a(f'v_add_u32 v{V_A}, s49, v12')
    a(f'v_add_u32 v{V_AH}, 16384, v12')
    a(f'v_lshrrev_b32 v13, 4, v{L}')
    a(f'v_bfe_u32 v15, v{L}, 2, 2')
    a(f'v_and_b32 v16, 3, v{L}')
    a('v_lshlrev_b32 v17, 10, v13')
    a('v_lshl_add_u32 v17, v15, 7, v17')
    a('v_lshl_add_u32 v17, v16, 3, v17')
    a(f'v_add_u32 v17, {WBASE}, v17')
    a('v_lshrrev_b32 v18, 1, v15')
    a('v_and_b32 v14, 1, v13')
    a('v_lshl_or_b32 v18, v14, 1, v18')
    a(f'v_lshrrev_b32 v19, 3, v{L}')
    a(f'v_bfe_u32 v20, v{L}, 1, 2')
    a('v_bfe_u32 v21, v19, 1, 1')
    a('v_xor_b32 v20, v20, v21')
    a(f'v_and_b32 v21, 1, v{L}')
    a('s_cmp_eq_u32 s48, 1')
    a('s_cbranch_scc1 L_k1_setupY')

    def line_voff(dst, pitch_s, col_s, kg_s):
        a(f's_lshl_b32 s54, s{kg_s}, 3')
        a(f'v_add_u32 v22, s54, v19')
        a(f'v_mul_lo_u32 v22, v22, s{pitch_s}')
        a(f's_and_b32 s54, s{kg_s}, 1'); a('s_lshl_b32 s54, s54, 1')
        a(f'v_xor_b32 v23, s54, v20')
        a('v_lshl_add_u32 v22, v23, 5, v22')
        a('v_lshl_add_u32 v22, v21, 4, v22')
        a(f'v_add_u32 v{dst}, s{col_s}, v22')

    def set_srd(dst, srcpair, size):
        a(f's_mov_b32 s{dst}, s{srcpair}'); a(f's_and_b32 s{dst+1}, s{srcpair+1}, 0xffff')
        a(f's_mov_b32 s{dst+2}, {size}'); a(f's_mov_b32 s{dst+3}, 0x20000')

    SZQ, SZF = 1024 * PITCH_QKV, 1024 * PITCH_F
    a(f's_lshr_b32 s49, s{S_W}, 1')
    a(f's_and_b32 s50, s{S_W}, 1')
    a(f's_lshl_b32 s51, s{S_NT}, 7')
    a('s_cmp_eq_u32 s49, 3')
    a('s_cbranch_scc1 L_k1_Xgate')
    set_srd(S_WM, 4, SZQ)
    a('s_lshl_b32 s52, s49, 11')
    a('s_add_u32 s51, s51, s52')
    a(f's_mov_b32 s53, {PITCH_QKV}')
    a('s_branch L_k1_Xg2')
    a.label('L_k1_Xgate')
    set_srd(S_WM, 8, SZF)
    a(f's_mov_b32 s53, {PITCH_F}')
    a.label('L_k1_Xg2')
    line_voff(V_WDMA, 53, 51, 50)
    a(f's_lshl_b32 s{S_INCW}, s53, 5')
    a(f's_mov_b32 s{S_SOW}, 0')
    a(f's_lshl_b32 s{S_SOW2}, s53, 4')
    a(f's_lshl_b32 s52, s49, 14')
    a('s_lshl_b32 s54, s50, 10')
    a('s_add_u32 s52, s52, s54')
    a(f's_add_u32 s{S_M0W}, s52, {WBASE}')
    a(f's_cmp_eq_u32 s{S_W}, 4')
    a('s_cbranch_scc1 L_k1_Xhalo')
    a(f's_cmp_eq_u32 s{S_W}, 5')
    a(f's_cselect_b32 s50, 3, s{S_W}')
    a('s_and_b32 s50, s50, 3')
    set_srd(S_OPT, 10, SZF)
    a(f's_lshl_b32 s51, s{S_NT}, 7')
    a(f's_mov_b32 s53, {PITCH_F}')
    line_voff(V_ODMA, 53, 51, 50)
    a(f's_mov_b32 s{S_INCO}, {32*PITCH_F}')
    a(f's_mov_b32 s{S_SOO}, 0')
    a('s_lshl_b32 s54, s50, 10')
    for sl in range(4):
        a(f's_add_u32 s{S_M0O+sl}, s54, {WBASE + 4*WCOL + sl*4096}')
    a('s_branch L_k1_Xrd')
    a.label('L_k1_Xhalo')
    for q in range(4):
        a(f's_mov_b32 s{S_OPT+q}, s{S_XN+q}')
    a(f's_lshl_b32 s51, s{S_MT}, 3')
    a('s_sub_u32 s51, s51, 1')
    a('s_max_i32 s51, s51, 0')
    a('s_lshl_b32 s51, s51, 16')
    a('s_add_u32 s51, s51, 1024')
    a(f'v_add_u32 v{V_ODMA}, s51, v12')
    a(f's_mov_b32 s{S_INCO}, 2048')
    a(f's_mov_b32 s{S_SOO}, 0')
    for sl in range(4):
        a(f's_mov_b32 s{S_M0O+sl}, {sl*ASTAGE + 16384}')
    a.label('L_k1_Xrd')
    a(f's_lshl_b32 s49, s{S_WNI}, 1')
    for b in range(2):
        a(f's_add_u32 s50, s49, {b}')
        a('v_xor_b32 v21, s50, v18')
        a(f'v_lshl_add_u32 v{V_W+b}, v21, 5, v17')
        a(f'v_add_u32 v{V_W+2+b}, {4*WCOL}, v{V_W+b}')
    a(f's_lshl_b32 s{S_KO0}, s{S_NT}, 1')
    a(f's_add_u32 s{S_KO0}, s{S_KO0}, s{S_WNI}')
    a(f's_add_u32 s{S_KO0}, s{S_KO0}, 32')
    a(f's_lshl_b32 s{S_KO0}, s{S_KO0}, 11')
    if fused: fuse.gen_fused_prologue(a, 'X', opt)
    else: gen_pf_setup(a, 'X', opt)
    XV = [(0, 2, True), (1, 3, True), (2, 4, True), (3, 5, False), (4, 2, True), (5, 3, True), (6, 4, False), (7, 5, False)]
    uniq = {}
    for (w, hj, o) in XV: uniq.setdefault((hj, o), []).append(w)
    for (hj, o), ws in uniq.items():
        for w in ws:
            a(f's_cmp_eq_u32 s{S_W}, {w}'); a(f's_cbranch_scc1 L_k1_X_{hj}_{int(o)}')
    for (hj, o), ws in uniq.items():
        a.label(f'L_k1_X_{hj}_{int(o)}')
        gen_mainloop(a, Variant('X', hj, o), opt)
        a('s_branch L_k1_epiX')
    a.label('L_k1_epiX')
    if opt.get('ts'):
        a(f's_memtime s[{S_TS+4}:{S_TS+5}]'); a('s_memrealtime s[76:77]')
    if fused: k2.gen_fused_early(a, opt)
    gen_epilogue(a, 'X', opt)
    a('s_branch L_k1_fin')

    a.label('L_k1_setupY')
    a(f's_mul_i32 s49, s{S_NT}, 320')
    a('s_add_u32 s49, s49, 2048')
    a(f's_and_b32 s50, s{S_NT}, 1')
    a('s_cmp_eq_u32 s50, 0')
    a('s_cselect_b32 s51, 0, 64')
    a('s_cselect_b32 s52, 256, 0')
    a('s_add_u32 s58, s49, s51')
    a('s_add_u32 s59, s49, s52')
    a(f's_lshr_b32 s49, s{S_W}, 1')
    a(f's_and_b32 s50, s{S_W}, 1')
    a('s_and_b32 s55, s49, 1')
    a('s_lshr_b32 s51, s49, 1')
    a('s_lshl_b32 s51, s51, 7')
    a('s_add_u32 s51, s51, s58')
    a('s_cmp_eq_u32 s55, 1')
    a('s_cselect_b32 s52, s10, s8')
    a('s_cselect_b32 s53, s11, s9')
    a(f's_mov_b32 s{S_WM}, s52'); a(f's_and_b32 s{S_WM+1}, s53, 0xffff')
    a(f's_mov_b32 s{S_WM+2}, {SZF}'); a(f's_mov_b32 s{S_WM+3}, 0x20000')
    a(f's_mov_b32 s53, {PITCH_F}')
    line_voff(V_WDMA, 53, 51, 50)
    a(f's_mov_b32 s{S_INCW}, {32*PITCH_F}')
    a(f's_mov_b32 s{S_SOW}, 0')
    a(f's_mov_b32 s{S_SOW2}, {16*PITCH_F}')
    a(f's_lshl_b32 s52, s49, 14')
    a('s_lshl_b32 s54, s50, 10')
    a('s_add_u32 s52, s52, s54')
    a(f's_add_u32 s{S_M0W}, s52, {WBASE}')
    a(f's_and_b32 s55, s{S_W}, 1')
    a(f's_bfe_u32 s50, s{S_W}, 0x10001')
    a('s_cmp_eq_u32 s55, 1')
    a('s_cselect_b32 s52, s10, s8')
    a('s_cselect_b32 s53, s11, s9')
    a(f's_mov_b32 s{S_OPT}, s52'); a(f's_and_b32 s{S_OPT+1}, s53, 0xffff')
    a(f's_mov_b32 s{S_OPT+2}, {SZF}'); a(f's_mov_b32 s{S_OPT+3}, 0x20000')
    a(f'v_lshrrev_b32 v22, 2, v{L}')
    a('v_bfe_u32 v14, v22, 3, 1')
    a('s_lshl_b32 s54, s50, 4')
    a('v_add_u32 v22, s54, v22')
    a(f's_mov_b32 s53, {PITCH_F}')
    a('v_mul_lo_u32 v22, v22, s53')
    a(f'v_bfe_u32 v23, v{L}, 1, 1')
    a('v_xor_b32 v23, v14, v23')
    a('v_lshl_add_u32 v22, v23, 5, v22')
    a(f'v_and_b32 v23, 1, v{L}')
    a('v_lshl_add_u32 v22, v23, 4, v22')
    a(f'v_add_u32 v{V_ODMA}, s59, v22')
    a(f's_mov_b32 s{S_INCO}, {32*PITCH_F}')
    a(f's_mov_b32 s{S_SOO}, 0')
    a('s_lshl_b32 s54, s50, 10')
    a('s_lshl_b32 s52, s55, 11')
    a('s_add_u32 s54, s54, s52')
    for sl in range(4):
        a(f's_add_u32 s{S_M0O+sl}, s54, {WBASE + 4*WCOL + sl*4096}')
    a(f's_lshl_b32 s49, s{S_WNI}, 15')
    a('v_add_u32 v22, s49, v17')
    for u in range(4):
        a(f'v_xor_b32 v21, {u}, v18')
        a(f'v_lshl_add_u32 v{V_W+u}, v21, 5, v22')
    a('v_lshlrev_b32 v22, 9, v13')
    a('v_lshl_add_u32 v22, v15, 6, v22')
    a('v_lshl_add_u32 v22, v16, 3, v22')
    a('v_and_b32 v14, 1, v13')
    a(f'v_xor_b32 v21, s{S_WNI}, v14')
    a('v_lshl_add_u32 v22, v21, 5, v22')
    a(f'v_add_u32 v{V_W+4}, {WBASE + 4*WCOL}, v22')
    a(f's_lshl_b32 s49, s{S_WNI}, 7')
    a('s_add_u32 s49, s49, s58')
    a('s_lshl_b32 s49, s49, 5')
    a(f's_add_u32 s{S_KO0}, s49, 65536')
    a('s_lshl_b32 s49, s59, 5')
    a(f's_add_u32 s{S_KO1}, s49, 65536')
    if fused: fuse.gen_fused_prologue(a, 'Y', opt)
    else: gen_pf_setup(a, 'Y', opt)
    a(f's_cmp_lt_u32 s{S_W}, 4')
    a('s_cbranch_scc0 L_k1_Y_0')
    gen_mainloop(a, Variant('Y', None, True), opt)
    a('s_branch L_k1_epiY')
    a.label('L_k1_Y_0')
    gen_mainloop(a, Variant('Y', None, False), opt)
    a.label('L_k1_epiY')
    if opt.get('ts'):
        a(f's_memtime s[{S_TS+4}:{S_TS+5}]'); a('s_memrealtime s[76:77]')
    if fused: k2.gen_fused_early(a, opt)
    gen_epilogue(a, 'Y', opt)
    a.label('L_k1_fin')
    if fused:
        k2.gen_fused_rest(a, opt)
    elif opt.get('ts'):
        a('s_waitcnt vmcnt(0)')
        a(f's_memtime s[{S_TS+6}:{S_TS+7}]')
        a('s_memrealtime s[78:79]')
        a('s_waitcnt lgkmcnt(0)')
        for q in (2, 4, 6):
            a(f's_sub_u32 s{S_TS+q}, s{S_TS+q}, s{S_TS}')
        a(f'v_mov_b32 v12, s{S_TS+2}'); a(f'v_mov_b32 v13, s{S_TS+4}'); a(f'v_mov_b32 v14, s{S_TS+6}'); a(f'v_mov_b32 v15, s{S_TS}')
        a('v_mov_b32 v16, s72'); a('v_mov_b32 v17, s74'); a('v_mov_b32 v18, s76'); a('v_mov_b32 v19, s78')
        a('s_lshl_b32 s46, s2, 3'); a(f's_add_u32 s46, s46, s{S_W}'); a('s_lshl_b32 s46, s46, 5')
        a(f's_add_u32 s46, s46, {WS_TS - WS_A2}')
        a('v_mov_b32 v20, 0')
        a(f'v_cmp_eq_u32 vcc, 0, v{V_LANE}')
        a('s_and_saveexec_b64 s[48:49], vcc')
        a(f'buffer_store_dwordx4 v[12:15], v20, s[{S_OUT}:{S_OUT+3}], s46 offen')
        a(f'buffer_store_dwordx4 v[16:19], v20, s[{S_OUT}:{S_OUT+3}], s46 offen offset:16')
    a.label('L_k1_end')
    a('s_endpgm')
    return kernel_header(name) + a.text(), kernel_desc(name, 256, 200)
```

```python
from asmlib import *
from sched import Sched
from k0 import WS_A2, A2_MB_STRIDE, WS_A2_SIZE, WS_TS, WS_SLAB
from k1 import mfma16, fbits

NS = 6
XST = 16384
WBASE = NS * XST
WCOL = NS * 4096
LDS_K2 = WBASE + 2 * WCOL
NST = 36

V_LANE = 0
V_ADMA, V_WDMA = 1, 2
V_A, V_A2 = 3, 4
V_W = 5
V_KEEP = 32
V_RES = 48
V_ACC = 64
def acc(j, i): return V_ACC + (4 * j + i) * 4
A_W = (0, 16); A_X = (32, 48)
S_T = 84
S_TS = 60
FUSED = False
NT_W = ''

def configure(fused):
    global S_A2, S_WO, S_WD, S_SLAB, S_W, S_WM, S_WN, S_MT, S_NT, S_KS, S_SOA, S_SOW, S_M0A, S_M0W, S_CNT, S_X, S_OUT, S_DBG
    global FUSED, xreg
    FUSED = fused
    S_W, S_WM, S_WN, S_MT = 28, 29, 30, 31
    if not fused:
        S_A2, S_WO, S_WD, S_SLAB = 12, 16, 20, 24
        S_NT, S_KS = 32, 33
        S_SOA, S_SOW, S_M0A, S_M0W, S_CNT = 34, 35, 36, 37, 38
        S_X, S_OUT, S_DBG = 40, 44, 48
        xreg = lambda st, i: ar(A_X[st] + 4 * i, 4)
    else:
        S_A2, S_WO, S_WD, S_SLAB = 24, 12, 16, 20
        S_NT, S_KS = 33, 34
        S_SOA, S_SOW, S_M0A, S_M0W, S_CNT = 35, 36, 37, 38, 45
        S_X, S_OUT, S_DBG = 80, 40, 96
        xreg = lambda st, i: vr(128 + 16 * st + 4 * i, 4)
configure(False)

def w_read(j, slot, st):
    r = A_W[st] + 4 * j
    off = slot * 4096
    return [f'ds_read_b64_tr_b16 {ar(r,2)}, v{V_W+j} offset:{off}',
            f'ds_read_b64_tr_b16 {ar(r+2,2)}, v{V_W+j} offset:{off+2048}']
def x_read(i, slot, st):
    base = V_A if slot < 3 else V_A2
    return f'ds_read_b128 {xreg(st, i)}, v{base} offset:{(slot%3)*XST + i*1024}'

def dma_list(t):
    slot = t % NS
    srd_ = S_WO if t < 8 else S_WD
    D = []
    D.append((([f's_mov_b32 s{S_SOA}, s{S_T+8}'] if t == 8 else []) + [f's_add_u32 m0, s{S_M0A}, {slot*XST}'],
              f'buffer_load_dwordx4 v{V_ADMA}, s[{S_A2}:{S_A2+3}], s{S_SOA} offen lds', None))
    D.append(([], f'buffer_load_dwordx4 v{V_ADMA}, s[{S_A2}:{S_A2+3}], s{S_SOA} offen offset:1024 lds',
              f's_add_u32 s{S_SOA}, s{S_SOA}, 2048'))
    D.append((([f's_mov_b32 s{S_SOW}, s{S_T+9}'] if t == 8 else []) + [f's_add_u32 m0, s{S_M0W}, {slot*4096}'],
              f'buffer_load_dwordx4 v{V_WDMA}, s[{srd_}:{srd_+3}], s{S_SOW} offen{NT_W} lds',
              f's_add_u32 s{S_SOW}, s{S_SOW}, {32*2048}'))
    return D

def gen_mainloop(a, opt):
    PD = NS - 1
    nodma = opt.get('no_dma2'); nomf = opt.get('no_mfma2')
    Q = []
    if not nodma:
        for t in range(PD):
            D = dma_list(t)
            for (pre, ld, post) in (D[0:2] if FUSED else D):
                for p in pre: a(p)
                if pre: a('s_nop 0')
                a(ld)
                if post: a(post)
                Q.append(t)
    if not FUSED:
        for r in range(V_ACC, V_ACC + 64): a(f'v_mov_b32 v{r}, 0')
    def landed(t):
        nonlocal Q
        last = max([q for q, e in enumerate(Q) if e == t], default=-1)
        Q = Q[last + 1:]
        return len(Q)
    a(f's_waitcnt vmcnt({landed(0)})')
    a('s_barrier')
    if opt.get('ts') and not FUSED:
        a(f's_memtime s[{S_TS+2}:{S_TS+3}]'); a('s_memrealtime s[74:75]'); a('s_waitcnt lgkmcnt(0)')
    S = Sched()
    def reads_for(st):
        slot = st % NS; b = st % 2
        R = []
        R.append((x_read(0, slot, b), ('x', st, 0)))
        for t in w_read(0, slot, b): R.append((t, ('w', st, 0)))
        for i in range(1, 4): R.append((x_read(i, slot, b), ('x', st, i)))
        for j in range(1, 4):
            for t in w_read(j, slot, b): R.append((t, ('w', st, j)))
        return R
    S.mark('pro')
    for (t, tag) in reads_for(0): S.read(t, tag)
    S.op(f's_waitcnt vmcnt({landed(1)})')
    S.op('s_barrier')
    for st in range(NST):
        S.mark(f'st{st}')
        b = st % 2
        R = reads_for(st + 1) if st + 1 < NST else []
        dm = dma_list(st + PD) if (st + PD < NST and not nodma) else []
        gaps = [[] for _ in range(16)]
        for idx, x in enumerate(R): gaps[idx].append(('r', x))
        dpos = opt.get('dma_pos2', [1, 5, 9])
        for idx, (pre, ld, post) in enumerate(dm):
            g = dpos[idx]
            for p in pre: gaps[g - 1].append(('o', p))
            gaps[g].append(('o', ld))
            if post: gaps[g].append(('o', post))
            Q.append(st + PD)
        n = 0
        for j in range(4):
            for i in range(4):
                t = mfma16(acc(j, i), ar(A_W[b] + 4 * j, 4), xreg(b, i))
                S.op('s_nop 0' if nomf else t, [('w', st, j), ('x', st, i)])
                for kind, x in gaps[n]:
                    if kind == 'r': S.read(x[0], x[1])
                    else: S.op(x)
                n += 1
        if st + 2 < NST: S.op(f's_waitcnt vmcnt({0 if nodma else landed(st + 2)})')
        if st < NST - 1 and not opt.get('no_barrier2'): S.op('s_barrier')
    segs = S.finalize()
    for k in range(2, 5):
        for s in range(6):
            assert segs[f'st{6*k+s}'] == segs[f'st{6+s}'], (k, s)
    a.extend(segs['pro'])
    for s in range(6): a.extend(segs[f'st{s}'])
    a(f's_mov_b32 s{S_CNT}, 4')
    a('.p2align 3')
    a.label('L_k2_loop')
    for s in range(6, 12): a.extend(segs[f'st{s}'])
    a(f's_sub_u32 s{S_CNT}, s{S_CNT}, 1')
    a(f's_cmp_lg_u32 s{S_CNT}, 0')
    a('s_cbranch_scc1 L_k2_loop')
    for s in range(30, 36): a.extend(segs[f'st{s}'])

def srd(a, dst, lo, hi, size, add=0):
    if add:
        a(f's_add_u32 s{dst}, s{lo}, {add}'); a(f's_addc_u32 s{dst+1}, s{hi}, 0'); a(f's_and_b32 s{dst+1}, s{dst+1}, 0xffff')
    else:
        a(f's_mov_b32 s{dst}, s{lo}'); a(f's_and_b32 s{dst+1}, s{hi}, 0xffff')
    a(f's_mov_b32 s{dst+2}, {size}'); a(f's_mov_b32 s{dst+3}, 0x20000')

def gen_setup_x(a):
    L = V_LANE
    a(f's_lshl_b32 s56, s{S_MT}, 3'); a(f's_add_u32 s56, s56, s{S_W}')
    a(f's_mul_i32 s56, s56, {A2_MB_STRIDE}')
    a(f'v_lshlrev_b32 v10, 4, v{L}')
    a(f'v_add_u32 v{V_ADMA}, s56, v10')
    a(f's_lshl_b32 s{S_SOA}, s{S_KS}, 14')
    a(f's_mul_i32 s{S_T+8}, s{S_KS}, {28*2048}'); a(f's_add_u32 s{S_T+8}, s{S_T+8}, {32*2048}')
    a(f's_lshl_b32 s{S_M0A}, s{S_W}, 11')
    a(f's_mul_i32 s{S_T+9}, s{S_KS}, {896*2048}')

def gen_setup_w(a):
    L = V_LANE
    a(f'v_lshrrev_b32 v12, 3, v{L}')
    a(f'v_bfe_u32 v13, v{L}, 1, 2')
    a('v_bfe_u32 v14, v12, 1, 2')
    a('v_xor_b32 v13, v13, v14')
    a(f's_lshl_b32 s56, s{S_WM}, 3')
    a('v_add_u32 v12, s56, v12')
    a('v_lshlrev_b32 v12, 11, v12')
    a('v_lshl_add_u32 v12, v13, 5, v12')
    a(f'v_and_b32 v13, 1, v{L}')
    a('v_lshl_add_u32 v12, v13, 4, v12')
    a(f's_lshl_b32 s56, s{S_NT}, 8'); a(f's_lshl_b32 s57, s{S_WN}, 7'); a('s_add_u32 s56, s56, s57')
    a(f'v_add_u32 v{V_WDMA}, s56, v12')
    a(f's_mul_i32 s{S_SOW}, s{S_KS}, {256*2048}')
    a(f's_mul_i32 s56, s{S_WN}, {WCOL}'); a(f's_lshl_b32 s57, s{S_WM}, 10'); a('s_add_u32 s56, s56, s57')
    a(f's_add_u32 s{S_M0W}, s56, {WBASE}')

def gen_setup_rd(a):
    L = V_LANE
    a(f'v_lshlrev_b32 v10, 4, v{L}')
    a(f's_lshl_b32 s56, s{S_WM}, 12')
    a(f'v_add_u32 v{V_A}, s56, v10')
    a(f'v_add_u32 v{V_A2}, {3*XST}, v{V_A}')
    a(f'v_lshrrev_b32 v11, 5, v{L}')
    a('v_lshlrev_b32 v12, 10, v11')
    a(f'v_bfe_u32 v13, v{L}, 4, 1')
    a(f'v_bfe_u32 v14, v{L}, 2, 2')
    a('v_lshl_add_u32 v15, v13, 2, v14')
    a('v_lshl_add_u32 v12, v15, 7, v12')
    a(f'v_and_b32 v16, 3, v{L}')
    a('v_lshl_add_u32 v12, v16, 3, v12')
    a(f's_mul_i32 s56, s{S_WN}, {WCOL}'); a(f's_add_u32 s56, s56, {WBASE}')
    a('v_add_u32 v12, s56, v12')
    a('v_lshrrev_b32 v15, 1, v15')
    for u in range(4):
        a(f'v_xor_b32 v16, {u}, v15')
        a(f'v_lshl_add_u32 v{V_W+u}, v16, 5, v12')

def gen_epilogue(a, opt):
    L = V_LANE
    ts = opt.get('ts') and not FUSED
    a(f'v_and_b32 v10, 15, v{L}')
    a(f's_lshl_b32 s56, s{S_MT}, 8'); a(f's_lshl_b32 s57, s{S_WM}, 6'); a('s_add_u32 s56, s56, s57')
    a(f's_lshl_b32 s57, s{S_KS}, 4'); a('s_add_u32 s56, s56, s57')
    a('v_add_u32 v10, s56, v10')
    a('v_lshlrev_b32 v10, 11, v10')
    a(f'v_bfe_u32 v11, v{L}, 4, 1')
    a('v_lshl_add_u32 v10, v11, 5, v10')
    a(f'v_lshrrev_b32 v11, 5, v{L}')
    a('v_lshl_add_u32 v10, v11, 4, v10')
    a(f's_lshl_b32 s56, s{S_NT}, 8'); a(f's_lshl_b32 s57, s{S_WN}, 7'); a('s_add_u32 s56, s56, s57')
    a('v_add_u32 v9, s56, v10')
    a(f'buffer_load_dwordx4 v[{V_RES}:{V_RES+3}], v9, s[{S_X}:{S_X+3}], 0 offen')
    a(f'buffer_load_dwordx4 v[{V_RES+4}:{V_RES+7}], v9, s[{S_X}:{S_X+3}], 0 offen offset:64')
    a('s_nop 7')
    a(f's_lshl_b32 s56, s{S_MT}, 3'); a(f's_add_u32 s56, s56, s{S_NT}')
    a(f's_mul_i32 s56, s56, {4*3*16384}')
    a(f's_lshl_b32 s57, s{S_W}, 11'); a(f's_add_u32 s{S_T+6}, s56, s57')
    a(f'v_lshlrev_b32 v11, 4, v{L}')
    for i in range(4):
        lab = f'L_k2_keep{i}'; nxt = f'L_k2_n{i}'
        a(f's_cmp_eq_u32 s{S_KS}, {i}')
        a(f's_cbranch_scc1 {lab}')
        for j in range(4):
            A = acc(j, i)
            a(f'v_cvt_pk_bf16_f32 v{12+2*j}, v{A}, v{A+1}')
            a(f'v_cvt_pk_bf16_f32 v{13+2*j}, v{A+2}, v{A+3}')
        a(f's_xor_b32 s56, s{S_KS}, {i}')
        a(f's_add_u32 s56, s56, {3*i - 1}')
        a('s_lshl_b32 s56, s56, 14')
        a(f's_add_u32 s56, s56, s{S_T+6}')
        a(f'buffer_store_dwordx4 v[12:15], v11, s[{S_SLAB}:{S_SLAB+3}], s56 offen sc1')
        a(f'buffer_store_dwordx4 v[16:19], v11, s[{S_SLAB}:{S_SLAB+3}], s56 offen offset:1024 sc1')
        a('s_nop 1')
        a(f's_branch {nxt}')
        a.label(lab)
        for j in range(4):
            for r in range(4): a(f'v_mov_b32 v{V_KEEP+4*j+r}, v{acc(j,i)+r}')
        a.label(nxt)
    if ts: a('s_memtime s[94:95]')
    a(f's_mul_i32 s56, s{S_KS}, {3*16384}'); a(f's_add_u32 s{S_T+7}, s{S_T+6}, s56')
    a('s_mov_b32 s58, 0')
    a.label('L_k2_poll')
    for n in range(3):
        a(f's_add_u32 s56, s{S_T+7}, {n*16384}')
        d = V_ACC + 8 * n
        a(f'buffer_load_dwordx4 v[{d}:{d+3}], v11, s[{S_SLAB}:{S_SLAB+3}], s56 offen sc1')
        a(f'buffer_load_dwordx4 v[{d+4}:{d+7}], v11, s[{S_SLAB}:{S_SLAB+3}], s56 offen offset:1024 sc1')
    a('s_waitcnt vmcnt(0)')
    a(f'v_max3_u32 v12, v{V_ACC}, v{V_ACC+1}, v{V_ACC+2}')
    for q in range(3, 23, 2):
        a(f'v_max3_u32 v12, v12, v{V_ACC+q}, v{V_ACC+q+1}')
    a(f'v_max_u32 v12, v12, v{V_ACC+23}')
    a('v_cmp_eq_u32 vcc, -1, v12')
    a('s_add_u32 s58, s58, 1')
    a('s_cbranch_vccz L_k2_wait_done')
    a('s_cmp_lt_u32 s58, 0x4000')
    a('s_cbranch_scc0 L_k2_wait_done')
    a(f's_sleep {opt.get("poll_sleep", 2)}')
    a('s_branch L_k2_poll')
    a.label('L_k2_wait_done')
    if ts: a('s_memtime s[80:81]'); a('v_mov_b32 v63, s58')
    for n in range(3):
        d = V_ACC + 8 * n
        for q in range(8):
            k = V_KEEP + 4 * (q >> 1) + 2 * (q & 1)
            a(f'v_lshlrev_b32 v12, 16, v{d+q}')
            a(f'v_and_b32 v13, 0xffff0000, v{d+q}')
            a(f'v_add_f32 v{k}, v{k}, v12')
            a(f'v_add_f32 v{k+1}, v{k+1}, v13')
    a('s_nop 1')
    for p in range(2):
        T = V_KEEP + 8 * p; U = T + 4
        for r in range(4): a(f'v_permlane16_swap_b32 v{T+r}, v{U+r}')
    a('s_nop 1')
    for p in range(2):
        T = V_KEEP + 8 * p; R = V_RES + 4 * p
        for q in range(4):
            a(f'v_lshlrev_b32 v12, 16, v{R+q}')
            a(f'v_and_b32 v13, 0xffff0000, v{R+q}')
            a(f'v_add_f32 v{T+2*q}, v{T+2*q}, v12')
            a(f'v_add_f32 v{T+2*q+1}, v{T+2*q+1}, v13')
        for q in range(4):
            a(f'v_cvt_pk_bf16_f32 v{16+4*p+q}, v{T+2*q}, v{T+2*q+1}')
    a(f'buffer_store_dwordx4 v[16:19], v9, s[{S_OUT}:{S_OUT+3}], 0 offen')
    a(f'buffer_store_dwordx4 v[20:23], v9, s[{S_OUT}:{S_OUT+3}], 0 offen offset:64')

def gen_fused_early(a, opt):
    global NT_W
    configure(True); NT_W = ''
    L = V_LANE
    a('s_load_dwordx2 s[12:13], s[0:1], 16')
    a('s_load_dwordx2 s[16:17], s[0:1], 48')
    a('s_and_b32 s56, s2, 7')
    a(f's_lshr_b32 s{S_KS}, s56, 1')
    a('s_and_b32 s56, s56, 1'); a('s_lshl_b32 s56, s56, 2')
    a('s_bfe_u32 s57, s2, 0x20003')
    a(f's_add_u32 s{S_NT}, s56, s57')
    a('s_waitcnt lgkmcnt(0)')
    a(f's_and_b32 s{S_WO+1}, s{S_WO+1}, 0xffff'); a(f's_mov_b32 s{S_WO+2}, {1024*2048}'); a(f's_mov_b32 s{S_WO+3}, 0x20000')
    a(f's_and_b32 s{S_WD+1}, s{S_WD+1}, 0xffff'); a(f's_mov_b32 s{S_WD+2}, {3584*2048}'); a(f's_mov_b32 s{S_WD+3}, 0x20000')
    gen_setup_w(a)
    for t in range(NS - 1):
        pre, ld, post = dma_list(t)[2]
        for p in pre: a(p)
        a('s_nop 0')
        a(ld); a(post)
    if not opt.get('pf_panel', 1): return
    a(f'v_lshrrev_b32 v12, 1, v{L}')
    a(f'v_and_b32 v13, 1, v{L}')
    a('v_lshlrev_b32 v13, 7, v13')
    a(f's_lshl_b32 s56, s{S_NT}, 8')
    a('v_add_u32 v13, s56, v13')
    a('v_mov_b32 v14, 0x7ffffff0')
    for (srd_, per_ks, per_mt, per_w) in ((S_WO, 256, 32, 4), (S_WD, 896, 112, 14)):
        a(f's_mul_i32 s56, s{S_KS}, {per_ks}'); a(f's_mul_i32 s57, s{S_MT}, {per_mt}'); a('s_add_u32 s56, s56, s57')
        a(f's_mul_i32 s57, s{S_W}, {per_w}'); a('s_add_u32 s56, s56, s57')
        a('v_add_u32 v15, s56, v12')
        a('v_lshl_add_u32 v15, v15, 11, v13')
        a(f'v_cmp_gt_u32 vcc, {2*per_w}, v{L}')
        a('s_nop 1')
        a('v_cndmask_b32 v15, v14, v15, vcc')
        a(f'buffer_load_dword v31, v15, s[{srd_}:{srd_+3}], 0 offen')

def gen_fused_rest(a, opt):
    import fuse
    configure(True)
    L = V_LANE
    a('s_waitcnt vmcnt(0)')
    a('s_barrier')
    if opt.get('ts'): a('s_memrealtime s[100:101]')
    fuse.gen_arrive(a, 16)
    a('s_load_dwordx2 s[80:81], s[0:1], 0')
    a('s_load_dwordx2 s[40:41], s[0:1], 56')
    a('s_waitcnt lgkmcnt(0)')
    a(f's_and_b32 s{S_X+1}, s{S_X+1}, 0xffff'); a(f's_mov_b32 s{S_X+2}, {2048*2048}'); a(f's_mov_b32 s{S_X+3}, 0x20000')
    a(f's_and_b32 s{S_OUT+1}, s{S_OUT+1}, 0xffff'); a(f's_mov_b32 s{S_OUT+2}, {2048*2048}'); a(f's_mov_b32 s{S_OUT+3}, 0x20000')
    srd(a, S_SLAB, 6, 7, 12 << 20, WS_SLAB)
    gen_setup_x(a)
    gen_setup_rd(a)
    for r in range(V_ACC, V_ACC + 64): a(f'v_mov_b32 v{r}, 0')
    fuse.gen_wait(a, 16, False, opt)
    if opt.get('ts'): a('s_memrealtime s[66:67]')
    gen_mainloop(a, opt)
    if opt.get('ts'): a('s_memrealtime s[68:69]')
    gen_epilogue(a, opt)
    if opt.get('ts'):
        a('s_waitcnt vmcnt(0)')
        a('s_memrealtime s[78:79]')
        a('s_waitcnt lgkmcnt(0)')
        a('s_sub_u32 s64, s64, s62')
        for q, r in enumerate((64, 72, 74, 76, 100, 66, 68, 78)): a(f'v_mov_b32 v{12+q}, s{r}')
        srd(a, 84, 6, 7, 1 << 20, WS_TS)
        a('s_lshl_b32 s56, s2, 3'); a(f's_add_u32 s56, s56, s{S_W}'); a('s_lshl_b32 s56, s56, 5')
        a('v_mov_b32 v20, 0')
        a(f'v_cmp_eq_u32 vcc, 0, v{L}')
        a('s_and_saveexec_b64 s[58:59], vcc')
        a('buffer_store_dwordx4 v[12:15], v20, s[84:87], s56 offen')
        a('buffer_store_dwordx4 v[16:19], v20, s[84:87], s56 offen offset:16')

def gen_k2(opt, name='gemm2_kernel'):
    global NT_W
    configure(False)
    NT_W = ' nt' if opt.get('nt_w2') else ''
    a = Asm()
    L = V_LANE
    a('s_cmp_ge_u32 s2, 256')
    a('s_cbranch_scc1 L_k2_end')
    if opt.get('ts'):
        a(f's_memtime s[{S_TS}:{S_TS+1}]'); a('s_memrealtime s[72:73]')
    a('s_load_dwordx2 s[4:5], s[0:1], 0')
    a('s_load_dwordx2 s[6:7], s[0:1], 16')
    a('s_load_dwordx4 s[8:11], s[0:1], 48')
    a('s_load_dwordx4 s[52:55], s[0:1], 64')
    a('v_lshrrev_b32 v10, 6, v0')
    a(f'v_and_b32 v{L}, 63, v0')
    a('s_nop 0')
    a(f'v_readfirstlane_b32 s{S_W}, v10')
    a('s_and_b32 s56, s2, 7')
    a('s_lshr_b32 s57, s2, 3')
    a(f's_lshr_b32 s{S_KS}, s56, 1')
    a('s_and_b32 s56, s56, 1')
    a('s_lshl_b32 s56, s56, 2')
    a('s_and_b32 s58, s57, 3')
    a(f's_add_u32 s{S_MT}, s56, s58')
    a(f's_lshr_b32 s{S_NT}, s57, 2')
    a(f's_and_b32 s{S_WM}, s{S_W}, 3')
    a(f's_lshr_b32 s{S_WN}, s{S_W}, 2')
    a('s_waitcnt lgkmcnt(0)')
    srd(a, S_A2, 54, 55, WS_A2_SIZE, WS_A2)
    srd(a, S_SLAB, 54, 55, (32 << 20) if opt.get('ts') else (12 << 20), WS_SLAB)
    srd(a, S_WO, 6, 7, 1024 * 2048)
    srd(a, S_WD, 8, 9, 3584 * 2048)
    srd(a, S_X, 4, 5, 2048 * 2048)
    srd(a, S_OUT, 10, 11, 2048 * 2048)
    srd(a, S_DBG, 52, 53, 256)
    gen_setup_x(a)
    gen_setup_w(a)
    gen_setup_rd(a)
    gen_mainloop(a, opt)
    if opt.get('ts'):
        a(f's_memtime s[{S_TS+4}:{S_TS+5}]'); a('s_memrealtime s[76:77]')
    gen_epilogue(a, opt)
    if opt.get('ts'):
        a('s_waitcnt vmcnt(0)')
        a(f's_memtime s[{S_TS+6}:{S_TS+7}]'); a('s_memrealtime s[78:79]')
        a('s_waitcnt lgkmcnt(0)')
        for q in (2, 4, 6): a(f's_sub_u32 s{S_TS+q}, s{S_TS+q}, s{S_TS}')
        a(f's_sub_u32 s80, s80, s{S_TS}')
        a(f's_sub_u32 s{S_TS+2}, s94, s{S_TS}')
        a(f'v_mov_b32 v12, s{S_TS+2}'); a(f'v_mov_b32 v13, s{S_TS+4}'); a(f'v_mov_b32 v14, s{S_TS+6}'); a('v_mov_b32 v15, s80')
        a('v_lshlrev_b32 v63, 24, v63'); a('v_and_b32 v12, 0xffffff, v12'); a('v_or_b32 v12, v12, v63')
        a('v_mov_b32 v16, s72'); a('v_mov_b32 v17, s74'); a('v_mov_b32 v18, s76'); a('v_mov_b32 v19, s78')
        a('s_lshl_b32 s56, s2, 3'); a(f's_add_u32 s56, s56, s{S_W}'); a('s_lshl_b32 s56, s56, 5')
        a(f's_add_u32 s56, s56, {WS_TS + (2 << 20) - WS_SLAB}')
        a('v_mov_b32 v20, 0')
        a(f'v_cmp_eq_u32 vcc, 0, v{L}')
        a('s_and_saveexec_b64 s[58:59], vcc')
        a(f'buffer_store_dwordx4 v[12:15], v20, s[{S_SLAB}:{S_SLAB+3}], s56 offen')
        a(f'buffer_store_dwordx4 v[16:19], v20, s[{S_SLAB}:{S_SLAB+3}], s56 offen offset:16')
    a.label('L_k2_end')
    a('s_endpgm')
    return kernel_header(name) + a.text(), kernel_desc(name, 192, 128)
```

```python
import sys
from asmlib import *
import k0, k1, k2

HEAD = """; parallel_sum(sliding-local-dilated attention, GeGLU FFN) with pre-LayerNorm, MI355X gfx950
"""

def build_text(launches, bodies, descs):
    t = HEAD
    for (k, g, b, lds) in launches:
        t += f'; @launch kernel={k} grid=({g},1,1) block=({b},1,1) lds={lds}\n'
    t += '.amdgcn_target "amdgcn-amd-amdhsa--gfx950"\n'
    for b in bodies: t += b
    for d in descs: t += d
    return t

def gen_k01(opt):
    b0, d0 = k0.gen_k0(opt)
    b1, d1 = k1.gen_k1(opt)
    return build_text([('ln_kernel', 256, 512, 1024), ('gemm1_kernel', 256, 512, k1.LDS_K1)], [b0, b1], [d0, d1])

def gen_all(opt):
    opt.setdefault('sentinel', 2); opt.setdefault('pf_w2', 0); opt.setdefault('pf_w1x', 0)
    opt.setdefault('nt_w1', 1); opt.setdefault('nt_w2', 1); opt.setdefault('nt_x', 1)
    b0, d0 = k0.gen_k0(opt)
    b1, d1 = k1.gen_k1(opt)
    b2, d2 = k2.gen_k2(opt)
    return build_text([('ln_kernel', 256, 512, 1024), ('gemm1_kernel', 256, 512, k1.LDS_K1), ('gemm2_kernel', 256, 512, k2.LDS_K2)],
                      [b0, b1, b2], [d0, d1, d2])

def gen_fused(opt):
    import fuse
    opt['fused'] = 1
    opt.setdefault('sentinel', 1); opt.setdefault('nt_w1', 1); opt.setdefault('nt_x', 1); opt.setdefault('st_fl', 'sc1')
    name = 'parallel_sum__sliding_local_dilated__geglu_ffn__prompt_kernel'
    b1, d1 = k1.gen_k1(opt, name)
    return build_text([(name, 256, 512, fuse.LDS_F)], [b1], [d1])

if __name__ == '__main__':
    import json
    opt = json.loads(sys.argv[2]) if len(sys.argv) > 2 else {}
    t = gen_fused(opt) if opt.get('fused') else gen_all(opt)
    open(sys.argv[1] if len(sys.argv) > 1 else 'all.s', 'w').write(t)
    print(len(t))
```

```python
from asmlib import *
from sched import Sched
from k0 import WS_A2, A2_MB_STRIDE, WS_A2_SIZE, WS_TS, WS_SLAB
from k1 import mfma16, fbits

NS = 6
XST = 16384
WBASE = NS * XST
WCOL = NS * 4096
LDS_K2 = WBASE + 2 * WCOL
NST = 36

V_LANE = 0
V_ADMA, V_WDMA = 1, 2
V_A, V_A2 = 3, 4
V_W = 5
V_KEEP = 32
V_RES = 48
V_ACC = 64
def acc(j, i): return V_ACC + (4 * j + i) * 4
A_W = (0, 16); A_X = (32, 48)
S_T = 84
S_TS = 60
FUSED = False
NT_W = ''

def configure(fused):
    global S_A2, S_WO, S_WD, S_SLAB, S_W, S_WM, S_WN, S_MT, S_NT, S_KS, S_SOA, S_SOW, S_M0A, S_M0W, S_CNT, S_X, S_OUT, S_DBG
    global FUSED, xreg
    FUSED = fused
    S_W, S_WM, S_WN, S_MT = 28, 29, 30, 31
    if not fused:
        S_A2, S_WO, S_WD, S_SLAB = 12, 16, 20, 24
        S_NT, S_KS = 32, 33
        S_SOA, S_SOW, S_M0A, S_M0W, S_CNT = 34, 35, 36, 37, 38
        S_X, S_OUT, S_DBG = 40, 44, 48
        xreg = lambda st, i: ar(A_X[st] + 4 * i, 4)
    else:
        S_A2, S_WO, S_WD, S_SLAB = 24, 12, 16, 20
        S_NT, S_KS = 33, 34
        S_SOA, S_SOW, S_M0A, S_M0W, S_CNT = 35, 36, 37, 38, 45
        S_X, S_OUT, S_DBG = 80, 40, 96
        xreg = lambda st, i: vr(128 + 16 * st + 4 * i, 4)
configure(False)

def w_read(j, slot, st):
    r = A_W[st] + 4 * j
    off = slot * 4096
    return [f'ds_read_b64_tr_b16 {ar(r,2)}, v{V_W+j} offset:{off}',
            f'ds_read_b64_tr_b16 {ar(r+2,2)}, v{V_W+j} offset:{off+2048}']
def x_read(i, slot, st):
    base = V_A if slot < 3 else V_A2
    return f'ds_read_b128 {xreg(st, i)}, v{base} offset:{(slot%3)*XST + i*1024}'

def dma_list(t):
    slot = t % NS
    srd_ = S_WO if t < 8 else S_WD
    D = []
    D.append((([f's_mov_b32 s{S_SOA}, s{S_T+8}'] if t == 8 else []) + [f's_add_u32 m0, s{S_M0A}, {slot*XST}'],
              f'buffer_load_dwordx4 v{V_ADMA}, s[{S_A2}:{S_A2+3}], s{S_SOA} offen lds', None))
    D.append(([], f'buffer_load_dwordx4 v{V_ADMA}, s[{S_A2}:{S_A2+3}], s{S_SOA} offen offset:1024 lds',
              f's_add_u32 s{S_SOA}, s{S_SOA}, 2048'))
    D.append((([f's_mov_b32 s{S_SOW}, s{S_T+9}'] if t == 8 else []) + [f's_add_u32 m0, s{S_M0W}, {slot*4096}'],
              f'buffer_load_dwordx4 v{V_WDMA}, s[{srd_}:{srd_+3}], s{S_SOW} offen{NT_W} lds',
              f's_add_u32 s{S_SOW}, s{S_SOW}, {32*2048}'))
    return D

def gen_mainloop(a, opt):
    PD = NS - 1
    nodma = opt.get('no_dma2'); nomf = opt.get('no_mfma2')
    Q = []
    if not nodma:
        for t in range(PD):
            D = dma_list(t)
            for (pre, ld, post) in (D[0:2] if (FUSED and not opt.get('late_w2')) else D):
                for p in pre: a(p)
                if pre: a('s_nop 0')
                a(ld)
                if post: a(post)
                Q.append(t)
    if not FUSED:
        for r in range(V_ACC, V_ACC + 64): a(f'v_mov_b32 v{r}, 0')
    def landed(t):
        nonlocal Q
        last = max([q for q, e in enumerate(Q) if e == t], default=-1)
        Q = Q[last + 1:]
        return len(Q)
    a(f's_waitcnt vmcnt({landed(0)})')
    a('s_barrier')
    if opt.get('ts') and not FUSED:
        a(f's_memtime s[{S_TS+2}:{S_TS+3}]'); a('s_memrealtime s[74:75]'); a('s_waitcnt lgkmcnt(0)')
    S = Sched()
    def reads_for(st):
        slot = st % NS; b = st % 2
        R = []
        R.append((x_read(0, slot, b), ('x', st, 0)))
        for t in w_read(0, slot, b): R.append((t, ('w', st, 0)))
        for i in range(1, 4): R.append((x_read(i, slot, b), ('x', st, i)))
        for j in range(1, 4):
            for t in w_read(j, slot, b): R.append((t, ('w', st, j)))
        return R
    S.mark('pro')
    for (t, tag) in reads_for(0): S.read(t, tag)
    S.op(f's_waitcnt vmcnt({landed(1)})')
    S.op('s_barrier')
    for st in range(NST):
        S.mark(f'st{st}')
        b = st % 2
        R = reads_for(st + 1) if st + 1 < NST else []
        dm = dma_list(st + PD) if (st + PD < NST and not nodma) else []
        gaps = [[] for _ in range(16)]
        for idx, x in enumerate(R): gaps[idx].append(('r', x))
        dpos = opt.get('dma_pos2', [1, 5, 9])
        for idx, (pre, ld, post) in enumerate(dm):
            g = dpos[idx]
            for p in pre: gaps[g - 1].append(('o', p))
            gaps[g].append(('o', ld))
            if post: gaps[g].append(('o', post))
            Q.append(st + PD)
        n = 0
        for j in range(4):
            for i in range(4):
                t = mfma16(acc(j, i), ar(A_W[b] + 4 * j, 4), xreg(b, i))
                S.op('s_nop 0' if nomf else t, [('w', st, j), ('x', st, i)])
                for kind, x in gaps[n]:
                    if kind == 'r': S.read(x[0], x[1])
                    else: S.op(x)
                n += 1
        if st + 2 < NST: S.op(f's_waitcnt vmcnt({0 if nodma else landed(st + 2)})')
        if st < NST - 1 and not opt.get('no_barrier2'): S.op('s_barrier')
    segs = S.finalize()
    for k in range(2, 5):
        for s in range(6):
            assert segs[f'st{6*k+s}'] == segs[f'st{6+s}'], (k, s)
    a.extend(segs['pro'])
    for s in range(6): a.extend(segs[f'st{s}'])
    a(f's_mov_b32 s{S_CNT}, 4')
    a('.p2align 3')
    a.label('L_k2_loop')
    for s in range(6, 12): a.extend(segs[f'st{s}'])
    a(f's_sub_u32 s{S_CNT}, s{S_CNT}, 1')
    a(f's_cmp_lg_u32 s{S_CNT}, 0')
    a('s_cbranch_scc1 L_k2_loop')
    for s in range(30, 36): a.extend(segs[f'st{s}'])

def srd(a, dst, lo, hi, size, add=0):
    if add:
        a(f's_add_u32 s{dst}, s{lo}, {add}'); a(f's_addc_u32 s{dst+1}, s{hi}, 0'); a(f's_and_b32 s{dst+1}, s{dst+1}, 0xffff')
    else:
        a(f's_mov_b32 s{dst}, s{lo}'); a(f's_and_b32 s{dst+1}, s{hi}, 0xffff')
    a(f's_mov_b32 s{dst+2}, {size}'); a(f's_mov_b32 s{dst+3}, 0x20000')

def gen_setup_x(a):
    L = V_LANE
    a(f's_lshl_b32 s56, s{S_MT}, 3'); a(f's_add_u32 s56, s56, s{S_W}')
    a(f's_mul_i32 s56, s56, {A2_MB_STRIDE}')
    a(f'v_lshlrev_b32 v10, 4, v{L}')
    a(f'v_add_u32 v{V_ADMA}, s56, v10')
    a(f's_lshl_b32 s{S_SOA}, s{S_KS}, 14')
    a(f's_mul_i32 s{S_T+8}, s{S_KS}, {28*2048}'); a(f's_add_u32 s{S_T+8}, s{S_T+8}, {32*2048}')
    a(f's_lshl_b32 s{S_M0A}, s{S_W}, 11')
    a(f's_mul_i32 s{S_T+9}, s{S_KS}, {896*2048}')

def gen_setup_w(a):
    L = V_LANE
    a(f'v_lshrrev_b32 v12, 3, v{L}')
    a(f'v_bfe_u32 v13, v{L}, 1, 2')
    a('v_bfe_u32 v14, v12, 1, 2')
    a('v_xor_b32 v13, v13, v14')
    a(f's_lshl_b32 s56, s{S_WM}, 3')
    a('v_add_u32 v12, s56, v12')
    a('v_lshlrev_b32 v12, 11, v12')
    a('v_lshl_add_u32 v12, v13, 5, v12')
    a(f'v_and_b32 v13, 1, v{L}')
    a('v_lshl_add_u32 v12, v13, 4, v12')
    a(f's_lshl_b32 s56, s{S_NT}, 8'); a(f's_lshl_b32 s57, s{S_WN}, 7'); a('s_add_u32 s56, s56, s57')
    a(f'v_add_u32 v{V_WDMA}, s56, v12')
    a(f's_mul_i32 s{S_SOW}, s{S_KS}, {256*2048}')
    a(f's_mul_i32 s56, s{S_WN}, {WCOL}'); a(f's_lshl_b32 s57, s{S_WM}, 10'); a('s_add_u32 s56, s56, s57')
    a(f's_add_u32 s{S_M0W}, s56, {WBASE}')

def gen_setup_rd(a):
    L = V_LANE
    a(f'v_lshlrev_b32 v10, 4, v{L}')
    a(f's_lshl_b32 s56, s{S_WM}, 12')
    a(f'v_add_u32 v{V_A}, s56, v10')
    a(f'v_add_u32 v{V_A2}, {3*XST}, v{V_A}')
    a(f'v_lshrrev_b32 v11, 5, v{L}')
    a('v_lshlrev_b32 v12, 10, v11')
    a(f'v_bfe_u32 v13, v{L}, 4, 1')
    a(f'v_bfe_u32 v14, v{L}, 2, 2')
    a('v_lshl_add_u32 v15, v13, 2, v14')
    a('v_lshl_add_u32 v12, v15, 7, v12')
    a(f'v_and_b32 v16, 3, v{L}')
    a('v_lshl_add_u32 v12, v16, 3, v12')
    a(f's_mul_i32 s56, s{S_WN}, {WCOL}'); a(f's_add_u32 s56, s56, {WBASE}')
    a('v_add_u32 v12, s56, v12')
    a('v_lshrrev_b32 v15, 1, v15')
    for u in range(4):
        a(f'v_xor_b32 v16, {u}, v15')
        a(f'v_lshl_add_u32 v{V_W+u}, v16, 5, v12')

def gen_epilogue(a, opt):
    L = V_LANE
    ts = opt.get('ts') and not FUSED
    a(f'v_and_b32 v10, 15, v{L}')
    a(f's_lshl_b32 s56, s{S_MT}, 8'); a(f's_lshl_b32 s57, s{S_WM}, 6'); a('s_add_u32 s56, s56, s57')
    a(f's_lshl_b32 s57, s{S_KS}, 4'); a('s_add_u32 s56, s56, s57')
    a('v_add_u32 v10, s56, v10')
    a('v_lshlrev_b32 v10, 11, v10')
    a(f'v_bfe_u32 v11, v{L}, 4, 1')
    a('v_lshl_add_u32 v10, v11, 5, v10')
    a(f'v_lshrrev_b32 v11, 5, v{L}')
    a('v_lshl_add_u32 v10, v11, 4, v10')
    a(f's_lshl_b32 s56, s{S_NT}, 8'); a(f's_lshl_b32 s57, s{S_WN}, 7'); a('s_add_u32 s56, s56, s57')
    a('v_add_u32 v9, s56, v10')
    a(f'buffer_load_dwordx4 v[{V_RES}:{V_RES+3}], v9, s[{S_X}:{S_X+3}], 0 offen')
    a(f'buffer_load_dwordx4 v[{V_RES+4}:{V_RES+7}], v9, s[{S_X}:{S_X+3}], 0 offen offset:64')
    a('s_nop 7')
    a(f's_lshl_b32 s56, s{S_MT}, 3'); a(f's_add_u32 s56, s56, s{S_NT}')
    a(f's_mul_i32 s56, s56, {4*3*16384}')
    a(f's_lshl_b32 s57, s{S_W}, 11'); a(f's_add_u32 s{S_T+6}, s56, s57')
    a(f'v_lshlrev_b32 v11, 4, v{L}')
    for i in range(4):
        lab = f'L_k2_keep{i}'; nxt = f'L_k2_n{i}'
        a(f's_cmp_eq_u32 s{S_KS}, {i}')
        a(f's_cbranch_scc1 {lab}')
        for j in range(4):
            A = acc(j, i)
            a(f'v_cvt_pk_bf16_f32 v{12+2*j}, v{A}, v{A+1}')
            a(f'v_cvt_pk_bf16_f32 v{13+2*j}, v{A+2}, v{A+3}')
        a(f's_xor_b32 s56, s{S_KS}, {i}')
        a(f's_add_u32 s56, s56, {3*i - 1}')
        a('s_lshl_b32 s56, s56, 14')
        a(f's_add_u32 s56, s56, s{S_T+6}')
        a(f'buffer_store_dwordx4 v[12:15], v11, s[{S_SLAB}:{S_SLAB+3}], s56 offen sc1')
        a(f'buffer_store_dwordx4 v[16:19], v11, s[{S_SLAB}:{S_SLAB+3}], s56 offen offset:1024 sc1')
        a('s_nop 1')
        a(f's_branch {nxt}')
        a.label(lab)
        for j in range(4):
            for r in range(4): a(f'v_mov_b32 v{V_KEEP+4*j+r}, v{acc(j,i)+r}')
        a.label(nxt)
    if ts: a('s_memtime s[94:95]')
    a(f's_mul_i32 s56, s{S_KS}, {3*16384}'); a(f's_add_u32 s{S_T+7}, s{S_T+6}, s56')
    a('s_mov_b32 s58, 0')
    a.label('L_k2_poll')
    for n in range(3):
        a(f's_add_u32 s56, s{S_T+7}, {n*16384}')
        d = V_ACC + 8 * n
        a(f'buffer_load_dwordx4 v[{d}:{d+3}], v11, s[{S_SLAB}:{S_SLAB+3}], s56 offen sc1')
        a(f'buffer_load_dwordx4 v[{d+4}:{d+7}], v11, s[{S_SLAB}:{S_SLAB+3}], s56 offen offset:1024 sc1')
    a('s_waitcnt vmcnt(0)')
    a(f'v_max3_u32 v12, v{V_ACC}, v{V_ACC+1}, v{V_ACC+2}')
    for q in range(3, 23, 2):
        a(f'v_max3_u32 v12, v12, v{V_ACC+q}, v{V_ACC+q+1}')
    a(f'v_max_u32 v12, v12, v{V_ACC+23}')
    a('v_cmp_eq_u32 vcc, -1, v12')
    a('s_add_u32 s58, s58, 1')
    a('s_cbranch_vccz L_k2_wait_done')
    a('s_cmp_lt_u32 s58, 0x4000')
    a('s_cbranch_scc0 L_k2_wait_done')
    a(f's_sleep {opt.get("poll_sleep", 2)}')
    a('s_branch L_k2_poll')
    a.label('L_k2_wait_done')
    if ts: a('s_memtime s[80:81]'); a('v_mov_b32 v63, s58')
    for n in range(3):
        d = V_ACC + 8 * n
        for q in range(8):
            k = V_KEEP + 4 * (q >> 1) + 2 * (q & 1)
            a(f'v_lshlrev_b32 v12, 16, v{d+q}')
            a(f'v_and_b32 v13, 0xffff0000, v{d+q}')
            a(f'v_add_f32 v{k}, v{k}, v12')
            a(f'v_add_f32 v{k+1}, v{k+1}, v13')
    a('s_nop 1')
    for p in range(2):
        T = V_KEEP + 8 * p; U = T + 4
        for r in range(4): a(f'v_permlane16_swap_b32 v{T+r}, v{U+r}')
    a('s_nop 1')
    for p in range(2):
        T = V_KEEP + 8 * p; R = V_RES + 4 * p
        for q in range(4):
            a(f'v_lshlrev_b32 v12, 16, v{R+q}')
            a(f'v_and_b32 v13, 0xffff0000, v{R+q}')
            a(f'v_add_f32 v{T+2*q}, v{T+2*q}, v12')
            a(f'v_add_f32 v{T+2*q+1}, v{T+2*q+1}, v13')
        for q in range(4):
            a(f'v_cvt_pk_bf16_f32 v{16+4*p+q}, v{T+2*q}, v{T+2*q+1}')
    a(f'buffer_store_dwordx4 v[16:19], v9, s[{S_OUT}:{S_OUT+3}], 0 offen')
    a(f'buffer_store_dwordx4 v[20:23], v9, s[{S_OUT}:{S_OUT+3}], 0 offen offset:64')

def gen_fused_early(a, opt):
    global NT_W
    configure(True); NT_W = ' nt' if opt.get('nt_w2e') else ''
    L = V_LANE
    a('s_load_dwordx2 s[12:13], s[0:1], 16')
    a('s_load_dwordx2 s[16:17], s[0:1], 48')
    a('s_and_b32 s56, s2, 7')
    a(f's_lshr_b32 s{S_KS}, s56, 1')
    a('s_and_b32 s56, s56, 1'); a('s_lshl_b32 s56, s56, 2')
    a('s_bfe_u32 s57, s2, 0x20003')
    a(f's_add_u32 s{S_NT}, s56, s57')
    a('s_waitcnt lgkmcnt(0)')
    a(f's_and_b32 s{S_WO+1}, s{S_WO+1}, 0xffff'); a(f's_mov_b32 s{S_WO+2}, {1024*2048}'); a(f's_mov_b32 s{S_WO+3}, 0x20000')
    a(f's_and_b32 s{S_WD+1}, s{S_WD+1}, 0xffff'); a(f's_mov_b32 s{S_WD+2}, {3584*2048}'); a(f's_mov_b32 s{S_WD+3}, 0x20000')
    gen_setup_w(a)
    if not opt.get('late_w2'):
        for t in range(NS - 1):
            pre, ld, post = dma_list(t)[2]
            for p in pre: a(p)
            a('s_nop 0')
            a(ld); a(post)
    NT_W = ' nt' if opt.get('nt_w2') else ''
    if not opt.get('pf_panel', 1): return
    a(f'v_lshrrev_b32 v12, 1, v{L}')
    a(f'v_and_b32 v13, 1, v{L}')
    a('v_lshlrev_b32 v13, 7, v13')
    a(f's_lshl_b32 s56, s{S_NT}, 8')
    a('v_add_u32 v13, s56, v13')
    a('v_mov_b32 v14, 0x7ffffff0')
    for (srd_, per_ks, per_mt, per_w) in ((S_WO, 256, 32, 4), (S_WD, 896, 112, 14)):
        a(f's_mul_i32 s56, s{S_KS}, {per_ks}'); a(f's_mul_i32 s57, s{S_MT}, {per_mt}'); a('s_add_u32 s56, s56, s57')
        a(f's_mul_i32 s57, s{S_W}, {per_w}'); a('s_add_u32 s56, s56, s57')
        a('v_add_u32 v15, s56, v12')
        a('v_lshl_add_u32 v15, v15, 11, v13')
        a(f'v_cmp_gt_u32 vcc, {2*per_w}, v{L}')
        a('s_nop 1')
        a('v_cndmask_b32 v15, v14, v15, vcc')
        a(f'buffer_load_dword v31, v15, s[{srd_}:{srd_+3}], 0 offen' + (' nt' if opt.get('nt_pf') else ''))

def gen_fused_rest(a, opt):
    import fuse
    configure(True)
    L = V_LANE
    if opt.get('wbl2'):
        a('s_waitcnt vmcnt(0)')
        a('s_barrier')
        a(f's_cmp_lg_u32 s{S_W}, 0'); a('s_cbranch_scc1 L_nowb')
        a('buffer_wbl2 sc1')
        a.label('L_nowb')
    a('s_waitcnt vmcnt(0)')
    a('s_barrier')
    if opt.get('ts') == 1: a('s_memrealtime s[100:101]')
    fuse.gen_arrive(a, 16)
    a('s_load_dwordx2 s[80:81], s[0:1], 0')
    a('s_load_dwordx2 s[40:41], s[0:1], 56')
    a('s_waitcnt lgkmcnt(0)')
    a(f's_and_b32 s{S_X+1}, s{S_X+1}, 0xffff'); a(f's_mov_b32 s{S_X+2}, {2048*2048}'); a(f's_mov_b32 s{S_X+3}, 0x20000')
    a(f's_and_b32 s{S_OUT+1}, s{S_OUT+1}, 0xffff'); a(f's_mov_b32 s{S_OUT+2}, {2048*2048}'); a(f's_mov_b32 s{S_OUT+3}, 0x20000')
    srd(a, S_SLAB, 6, 7, 12 << 20, WS_SLAB)
    gen_setup_x(a)
    gen_setup_rd(a)
    for r in range(V_ACC, V_ACC + 64): a(f'v_mov_b32 v{r}, 0')
    fuse.gen_wait(a, 16, False, opt)
    if opt.get('ts') == 1: a('s_memrealtime s[66:67]')
    gen_mainloop(a, opt)
    if opt.get('ts') == 1: a('s_memrealtime s[68:69]')
    gen_epilogue(a, opt)
    if opt.get('ts'):
        a('s_waitcnt vmcnt(0)')
        a('s_memrealtime s[78:79]')
        a('s_waitcnt lgkmcnt(0)')
        a('s_sub_u32 s64, s64, s62')
        if opt.get('dbgts'):
            a('s_not_b32 s56, s72')
            a(f's_cmp_eq_u32 s{S_W}, 0'); a('s_cbranch_scc0 L_nodbg')
            a(f'v_cmp_eq_u32 vcc, 0, v{L}'); a('s_and_saveexec_b64 s[58:59], vcc')
            for slot, r in ((1, 56), (2, 74), (3, 76), (5, 100), (6, 66), (7, 68), (9, 78), (10, 72)):
                a(f'v_mov_b32 v12, s{r}'); a(f'v_mov_b32 v13, {slot*4}')
                a(f'buffer_atomic_umax v12, v13, s[{S_DBG}:{S_DBG+3}], 0 offen sc1')
            a('s_mov_b64 exec, s[58:59]')
            a.label('L_nodbg')
        for q, r in enumerate((64, 72, 74, 76, 100, 66, 68, 78)): a(f'v_mov_b32 v{12+q}, s{r}')
        srd(a, 84, 6, 7, 1 << 20, WS_TS)
        a('s_lshl_b32 s56, s2, 3'); a(f's_add_u32 s56, s56, s{S_W}'); a('s_lshl_b32 s56, s56, 5')
        a('v_mov_b32 v20, 0')
        a(f'v_cmp_eq_u32 vcc, 0, v{L}')
        a('s_and_saveexec_b64 s[58:59], vcc')
        a('buffer_store_dwordx4 v[12:15], v20, s[84:87], s56 offen')
        a('buffer_store_dwordx4 v[16:19], v20, s[84:87], s56 offen offset:16')

def gen_k2(opt, name='gemm2_kernel'):
    global NT_W
    configure(False)
    NT_W = ' nt' if opt.get('nt_w2') else ''
    a = Asm()
    L = V_LANE
    a('s_cmp_ge_u32 s2, 256')
    a('s_cbranch_scc1 L_k2_end')
    if opt.get('ts'):
        a(f's_memtime s[{S_TS}:{S_TS+1}]'); a('s_memrealtime s[72:73]')
    a('s_load_dwordx2 s[4:5], s[0:1], 0')
    a('s_load_dwordx2 s[6:7], s[0:1], 16')
    a('s_load_dwordx4 s[8:11], s[0:1], 48')
    a('s_load_dwordx4 s[52:55], s[0:1], 64')
    a('v_lshrrev_b32 v10, 6, v0')
    a(f'v_and_b32 v{L}, 63, v0')
    a('s_nop 0')
    a(f'v_readfirstlane_b32 s{S_W}, v10')
    a('s_and_b32 s56, s2, 7')
    a('s_lshr_b32 s57, s2, 3')
    a(f's_lshr_b32 s{S_KS}, s56, 1')
    a('s_and_b32 s56, s56, 1')
    a('s_lshl_b32 s56, s56, 2')
    a('s_and_b32 s58, s57, 3')
    a(f's_add_u32 s{S_MT}, s56, s58')
    a(f's_lshr_b32 s{S_NT}, s57, 2')
    a(f's_and_b32 s{S_WM}, s{S_W}, 3')
    a(f's_lshr_b32 s{S_WN}, s{S_W}, 2')
    a('s_waitcnt lgkmcnt(0)')
    srd(a, S_A2, 54, 55, WS_A2_SIZE, WS_A2)
    srd(a, S_SLAB, 54, 55, (32 << 20) if opt.get('ts') else (12 << 20), WS_SLAB)
    srd(a, S_WO, 6, 7, 1024 * 2048)
    srd(a, S_WD, 8, 9, 3584 * 2048)
    srd(a, S_X, 4, 5, 2048 * 2048)
    srd(a, S_OUT, 10, 11, 2048 * 2048)
    srd(a, S_DBG, 52, 53, 256)
    gen_setup_x(a)
    gen_setup_w(a)
    gen_setup_rd(a)
    gen_mainloop(a, opt)
    if opt.get('ts'):
        a(f's_memtime s[{S_TS+4}:{S_TS+5}]'); a('s_memrealtime s[76:77]')
    gen_epilogue(a, opt)
    if opt.get('ts'):
        a('s_waitcnt vmcnt(0)')
        a(f's_memtime s[{S_TS+6}:{S_TS+7}]'); a('s_memrealtime s[78:79]')
        a('s_waitcnt lgkmcnt(0)')
        for q in (2, 4, 6): a(f's_sub_u32 s{S_TS+q}, s{S_TS+q}, s{S_TS}')
        a(f's_sub_u32 s80, s80, s{S_TS}')
        a(f's_sub_u32 s{S_TS+2}, s94, s{S_TS}')
        a(f'v_mov_b32 v12, s{S_TS+2}'); a(f'v_mov_b32 v13, s{S_TS+4}'); a(f'v_mov_b32 v14, s{S_TS+6}'); a('v_mov_b32 v15, s80')
        a('v_lshlrev_b32 v63, 24, v63'); a('v_and_b32 v12, 0xffffff, v12'); a('v_or_b32 v12, v12, v63')
        a('v_mov_b32 v16, s72'); a('v_mov_b32 v17, s74'); a('v_mov_b32 v18, s76'); a('v_mov_b32 v19, s78')
        a('s_lshl_b32 s56, s2, 3'); a(f's_add_u32 s56, s56, s{S_W}'); a('s_lshl_b32 s56, s56, 5')
        a(f's_add_u32 s56, s56, {WS_TS + (2 << 20) - WS_SLAB}')
        a('v_mov_b32 v20, 0')
        a(f'v_cmp_eq_u32 vcc, 0, v{L}')
        a('s_and_saveexec_b64 s[58:59], vcc')
        a(f'buffer_store_dwordx4 v[12:15], v20, s[{S_SLAB}:{S_SLAB+3}], s56 offen')
        a(f'buffer_store_dwordx4 v[16:19], v20, s[{S_SLAB}:{S_SLAB+3}], s56 offen offset:16')
    a.label('L_k2_end')
    a('s_endpgm')
    return kernel_header(name) + a.text(), kernel_desc(name, 192, 128)
```
